```python
import torch

def _softmax(x, axis=-1):
    return torch.softmax(x, dim=axis)
def _gelu(x):
    return torch.nn.functional.gelu(x, approximate="tanh")
def _silu(x):
    return torch.nn.functional.silu(x)
def _sigmoid(x):
    return torch.sigmoid(x)
def _layernorm(x, axis=-1, eps=1e-5):
    m = x.mean(dim=axis, keepdim=True)
    v = x.var(dim=axis, keepdim=True, unbiased=False)
    return (x - m) / torch.sqrt(v + eps)
def _scatter_add(tgt, idx, src, axis=0):
    return tgt.clone().index_add_(axis, idx, src)
def _segment_sum(src, seg, n):
    out = torch.zeros((n,) + src.shape[1:], dtype=src.dtype)
    return out.index_add_(0, seg, src)
def _pad(x, pw):
    flat = tuple(v for pair in reversed(pw) for v in pair)
    return torch.nn.functional.pad(x, flat)

kernel_name = 'sequential_preLN__spectral_gfnet__dense_activation_gelu__prompt'

def setup_inputs():

    _w = (lambda a: (lambda t: t.to(torch.bfloat16) if t.is_floating_point() else t)(torch.as_tensor(a)))
    def _A_setup():
        B, S, D = 1, 2048, 576
        Df = D // 2 + 1
        return {
            "x": _w((lambda *s: torch.randn(*s, dtype=torch.bfloat16) * 0.05)(B, S, D)),
            "w_r": _w((lambda *s: torch.randn(*s, dtype=torch.bfloat16) * 0.8)(S, Df) * 0.02),
            "w_i": _w((lambda *s: torch.randn(*s, dtype=torch.bfloat16) * 0.8)(S, Df) * 0.02),
        }
    _A_in = _A_setup()

    def _B_setup():
        B, S, D, F = 1, 2048, 576, 4608
        return {
            "x": _w((lambda *s: torch.randn(*s, dtype=torch.bfloat16) * 0.05)(B, S, D)),
            "w1": _w((lambda *s: torch.randn(*s, dtype=torch.bfloat16) * 0.8)(D, F) * (D ** -0.5)),
            "b1": _w((lambda *s: torch.randn(*s, dtype=torch.bfloat16) * 12.8)(F) * 0.01),
            "w2": _w((lambda *s: torch.randn(*s, dtype=torch.bfloat16) * 0.2)(F, D) * (F ** -0.5)),
            "b2": _w((lambda *s: torch.randn(*s, dtype=torch.bfloat16) * 3.2)(D) * 0.01),
        }
    _B_in = _B_setup()

    return {
        "A_x": _A_in["x"],
        "A_w_r": _A_in["w_r"],
        "A_w_i": _A_in["w_i"],
        "B_x": _B_in["x"],
        "B_w1": _B_in["w1"],
        "B_b1": _B_in["b1"],
        "B_w2": _B_in["w2"],
        "B_b2": _B_in["b2"],
    }

def reference(A_x, A_w_r, A_w_i, B_x, B_w1, B_b1, B_w2, B_b2):
    def _A_ref(x, w_r, w_i):
        B, S, D = x.shape
        X = (lambda x, axes=(-2,-1): torch.fft.rfft2(x.float(), dim=axes))(x, axes=(-2, -1))
        W = w_r + 1j * w_i
        X = X * W
        y = (lambda x, s, axes=(-2,-1): torch.fft.irfft2(x, s=s, dim=axes).to(torch.bfloat16))(X, (S, D), axes=(-2, -1))
        return y

    def _B_ref(x, w1, b1, w2, b2):
        h = torch.einsum("bsd,df->bsf", x, w1) + b1
        h = _gelu(h)
        return torch.einsum("bsf,fd->bsd", h, w2) + b2

    x = A_x
    h = x + _A_ref(_layernorm(x, axis=-1), A_w_r, A_w_i)
    h2 = h + _B_ref(_layernorm(h, axis=-1), B_w1, B_b1, B_w2, B_b2)
    return h2
```

```python
import re

TRANS = ('v_exp_f32', 'v_log_f32', 'v_rcp_f32', 'v_rsq_f32', 'v_sqrt_f32', 'v_sin_f32', 'v_cos_f32')

def parse_regs(tok):
    t = tok.strip()
    t = t.replace('abs(', '').replace(')', '').replace('|', '')
    if t.startswith('-'): t = t[1:]
    if t in ('vcc', 'vcc_lo', 'vcc_hi'): return [('x', 'vcc')]
    if t in ('exec', 'exec_lo', 'exec_hi'): return [('x', 'exec')]
    if t == 'm0': return [('x', 'm0')]
    m = re.fullmatch(r'([vas])(\d+)', t)
    if m: return [(m.group(1), int(m.group(2)))]
    m = re.fullmatch(r'([vas])\[(\d+):(\d+)\]', t)
    if m: return [(m.group(1), i) for i in range(int(m.group(2)), int(m.group(3)) + 1)]
    return []

def split_ops(s):
    out = []; depth = 0; cur = ''
    for ch in s:
        if ch == '[': depth += 1
        if ch == ']': depth -= 1
        if ch == ',' and depth == 0:
            out.append(cur); cur = ''
        else: cur += ch
    if cur.strip(): out.append(cur)
    return [o.strip() for o in out]

class Ins:
    __slots__ = ('text', 'op', 'kind', 'defs', 'uses', 'passes', 'srcc', 'dpp', 'sdwa', 'states', 'storedata', 'ldsdma', 'ab')
    def __init__(self, text):
        self.text = text
        t = text.split(';')[0].strip()
        parts = t.split(None, 1)
        self.op = parts[0] if parts else ''
        rest = parts[1] if len(parts) > 1 else ''
        self.defs = []; self.uses = []; self.passes = 0; self.srcc = []; self.ab = []
        self.dpp = False; self.sdwa = False; self.states = 1; self.storedata = []; self.ldsdma = False
        op = self.op
        if op.endswith(':') or op.startswith('.') or op == '':
            self.kind = 'label' if op.endswith(':') else 'dir'; self.states = 0; return
        ops = split_ops(rest)
        mods = ''
        if ops:
            last = ops[-1].split(None, 1)
            m = re.match(r'^(\S+\[[^\]]*\]|\S+)\s*(.*)$', ops[-1])
            ops[-1] = m.group(1); mods = m.group(2)
        R = [parse_regs(o) for o in ops]
        base = re.sub(r'_(e32|e64|dpp|sdwa)$', '', op)
        if op.startswith('v_mfma'):
            self.kind = 'mfma'
            self.passes = 8 if '32x32' in op else 4
            self.defs = R[0]; self.ab = R[1] + R[2]; self.srcc = R[3]; self.uses = R[1] + R[2] + R[3]
        elif op.startswith('v_'):
            self.kind = 'trans' if base in TRANS else 'valu'
            self.dpp = ('_dpp' in op) or ('quad_perm' in mods) or ('row_' in mods)
            self.sdwa = '_sdwa' in op or 'op_sel' in mods and not op.startswith('v_pk')
            if base.startswith('v_cmp'):
                self.defs = R[0]; self.uses = sum(R[1:], [])
                if base.startswith('v_cmpx'): self.defs = self.defs + [('x', 'exec')]
            elif base in ('v_readfirstlane_b32', 'v_readlane_b32'):
                self.kind = 'rdlane'; self.defs = R[0]; self.uses = sum(R[1:], [])
            elif 'permlane' in base and 'swap' in base:
                self.kind = 'perm'; self.defs = R[0] + R[1]; self.uses = R[0] + R[1]
            elif base in ('v_add_co_u32', 'v_sub_co_u32', 'v_addc_co_u32', 'v_subb_co_u32', 'v_mad_u64_u32'):
                self.defs = R[0] + R[1]; self.uses = sum(R[2:], [])
            else:
                self.defs = R[0]; self.uses = sum(R[1:], [])
                if base in ('v_fmac_f32', 'v_dot2c_f32_bf16', 'v_pk_fmac_f16', 'v_mac_f32') or self.dpp or 'UNUSED_PRESERVE' in mods or base == 'v_writelane_b32':
                    self.uses = self.uses + R[0]
                if base == 'v_cndmask_b32' and len(ops) == 3: self.uses = self.uses + [('x', 'vcc')]
        elif op.startswith('buffer_') or op.startswith('global_'):
            self.kind = 'vmem'
            lds = re.search(r'\blds\b', mods) is not None or 'load_lds' in op
            self.ldsdma = lds
            if 'load' in op and not lds:
                self.defs = R[0]; self.uses = sum(R[1:], [])
                if 'd16' in op: self.uses = self.uses + R[0]
            elif lds:
                self.uses = sum(R, []) + [('x', 'm0')]
            else:
                self.uses = sum(R, [])
                if op.startswith('buffer_'): data = R[0]
                else: data = R[1]
                if 'x4' in op or 'x3' in op: self.storedata = data
                if 'atomic' in op and 'sc0' in mods: self.defs = data
        elif op.startswith('ds_'):
            self.kind = 'ds'
            if op.startswith('ds_read') or op.startswith('ds_bpermute') or op.startswith('ds_permute') or op.startswith('ds_swizzle'):
                self.defs = R[0]; self.uses = sum(R[1:], [])
                if 'd16' in op: self.uses = self.uses + R[0]
            else:
                self.uses = sum(R, [])
        elif op == 's_nop':
            self.kind = 'salu'; self.states = int(rest.strip(), 0) + 1
        elif op.startswith('s_'):
            self.kind = 'salu'
            if op.startswith('s_cmp') or op.startswith('s_cbranch') or op.startswith('s_branch') or op in ('s_waitcnt', 's_barrier', 's_endpgm', 's_setprio', 's_sleep') or op.startswith('s_bitcmp'):
                self.uses = sum(R, [])
            else:
                self.defs = R[0] if R else []; self.uses = sum(R[1:], [])
                if 'saveexec' in op: self.defs = self.defs + [('x', 'exec')]
        else:
            raise ValueError('unknown instruction: ' + text)

def need_states(prod, cons):
    n = 0
    pd = set(prod.defs)
    pk, ck = prod.kind, cons.kind
    valu_like = ('valu', 'trans', 'rdlane', 'perm')
    vd = set(r for r in pd if r[0] in 'va')
    sd = set(r for r in pd if r[0] == 's' or r == ('x', 'vcc'))
    cu = set(cons.uses); cdf = set(cons.defs)
    if pk in valu_like:
        if ck == 'mfma' and vd & cu: n = max(n, 2)
        if ck in valu_like and cons.dpp and vd & cu: n = max(n, 2)
        if ck == 'perm' and vd & cu: n = max(n, 2)
        if ck == 'rdlane' and vd & cu: n = max(n, 1)
        if pk == 'trans' and ck in valu_like and vd & cu: n = max(n, 1)
        if prod.sdwa and ck in valu_like and vd & (cu | cdf): n = max(n, 1)
        if sd:
            if ck == 'vmem' and sd & cu: n = max(n, 5)
            if ck in valu_like and sd & cu: n = max(n, 2)
            if ck == 'rdlane' and sd & cu: n = max(n, 4)
            if ck == 'mfma' and sd & cu: n = max(n, 2)
        if ('x', 'exec') in pd:
            if ck == 'mfma': n = max(n, 4)
            if ck in valu_like and cons.dpp: n = max(n, 5)
            if ck in ('rdlane', 'perm'): n = max(n, 4)
            if ck in valu_like: n = max(n, 2)
    if prod.op.startswith('v_dot'):
        if vd & (cu | cdf):
            same = cons.op == prod.op
            if same:
                ops = [r for r in cons.uses]
                last = split_ops(cons.text.split(None, 1)[1])[-1].split()[0]
                srcc = set(parse_regs(last))
                ab = set(cons.uses) - srcc
                if vd & ab: n = max(n, 3)
            else:
                n = max(n, 3)
    if pk == 'mfma':
        p = prod.passes
        full = {2: 5, 4: 8, 8: 12}[p]
        if ck in valu_like or ck in ('vmem', 'ds'):
            if vd & (cu | cdf): n = max(n, full)
            if ck in valu_like and set(prod.srcc) & cdf: n = max(n, {2: 1, 4: 3, 8: 7}[p])
        if ck == 'mfma':
            if vd & set(cons.ab): n = max(n, full)
            if vd & set(cons.srcc):
                if not (prod.defs == cons.srcc and prod.passes == cons.passes): n = max(n, {2: 4, 4: 6, 8: 10}[p])
                elif p == 2: n = max(n, 2)
    if pk == 'salu' and ('x', 'm0') in pd and ck == 'vmem' and cons.ldsdma: n = max(n, 1)
    if pk == 'vmem' and prod.storedata:
        if set(prod.storedata) & cdf:
            n = max(n, 2 if ck in valu_like else 1)
    return n

def fix_hazards(lines, window=14, verbose=False):
    out = []; hist = []
    added = 0
    for ln in lines:
        s = ln.strip()
        if not s or s.startswith(';'):
            out.append(ln); continue
        ins = Ins(s)
        if ins.kind in ('label', 'dir'):
            out.append(ln); continue
        need = 0; dist = 0
        for h in reversed(hist):
            if dist >= window: break
            r = need_states(h, ins)
            if r > dist: need = max(need, r - dist)
            dist += h.states
        while need > 0:
            k = min(need, 16)
            nop = f's_nop {k-1}'
            out.append(nop); hist.append(Ins(nop)); need -= k; added += k
        out.append(ln); hist.append(ins)
        if len(hist) > 40: hist = hist[-40:]
    if verbose: print('hazard nops added (states):', added)
    return out

class Emit:
    def __init__(self):
        self.L = []
        self.vq = []
        self.lq = []
        self.nlabel = 0
    def __call__(self, s):
        for l in s.split('\n'):
            l = l.strip()
            if l: self.L.append(l)
    def vm(self, s, tag=None):
        self.L.append(s); self.vq.append(tag)
    def ds(self, s, tag=None):
        self.L.append(s); self.lq.append(tag)
    def _wait(self, q, tags, maxn):
        if not isinstance(tags, list): tags = [tags]
        idx = -1
        for i, t in enumerate(q):
            if t in tags: idx = i
        if idx < 0: return None
        n = len(q) - 1 - idx
        del q[:idx + 1]
        return n
    def wait_vm(self, tags):
        n = self._wait(self.vq, tags, 63)
        if n is None: return
        if n > 63: n = 63;
        self.L.append(f's_waitcnt vmcnt({n})')
        while len(self.vq) > n: self.vq.pop(0)
    def wait_ds(self, tags):
        n = self._wait(self.lq, tags, 15)
        if n is None: return
        if n > 15: n = 15
        self.L.append(f's_waitcnt lgkmcnt({n})')
        while len(self.lq) > n: self.lq.pop(0)
    def wait_all_vm(self):
        self.L.append('s_waitcnt vmcnt(0)'); self.vq = []
    def wait_all_ds(self):
        self.L.append('s_waitcnt lgkmcnt(0)'); self.lq = []
    def label(self, name): self.L.append(name + ':')
    def text(self, fix=True, verbose=False):
        L = fix_hazards(self.L, verbose=verbose) if fix else self.L
        return '\n'.join(L) + '\n'

def kernel_header(name):
    return f'.text\n.globl {name}\n.p2align 8\n.type {name},@function\n{name}:\n'

def kernel_desc(name, vgpr, agpr=0, sgpr=96):
    acc = (vgpr + 3)//4*4
    nfv = acc + agpr if agpr else vgpr
    return (f'.section .rodata,"a"\n.p2align 6\n.amdhsa_kernel {name}\n  .amdhsa_next_free_vgpr {nfv}\n  .amdhsa_next_free_sgpr {sgpr}\n'
            f'  .amdhsa_accum_offset {acc}\n  .amdhsa_group_segment_fixed_size 0\n  .amdhsa_kernarg_size 88\n  .amdhsa_user_sgpr_count 2\n'
            f'  .amdhsa_user_sgpr_kernarg_segment_ptr 1\n  .amdhsa_system_sgpr_workgroup_id_x 1\n  .amdhsa_float_denorm_mode_32 3\n.end_amdhsa_kernel\n')

def f2u(x):
    import struct
    return struct.unpack('<I', struct.pack('<f', x))[0]
def lit(x): return '0x%08x' % f2u(x)
```

```python
from asmlib import *
from layout import *
from k4 import srd_ws
from k3 import stats_tail

def gen_k1(name='k1_kernel', side=True):
    e = Emit()
    WS = 8; XS = 12; WRS = 16; WIS = 44
    NMAIN = 192; NSIDE = 64
    e(f's_cmp_ge_u32 s2, {NMAIN + (NSIDE if side else 0)}')
    e(f's_cbranch_scc1 {name}_end')
    e('s_load_dwordx2 s[4:5], s[0:1], 80')
    e('s_load_dwordx2 s[6:7], s[0:1], 0')
    e('s_load_dwordx2 s[20:21], s[0:1], 8')
    e('s_load_dwordx2 s[42:43], s[0:1], 16')
    e('v_lshrrev_b32 v2, 6, v0')
    e('v_and_b32 v1, 63, v0')
    e('v_readfirstlane_b32 s22, v2')
    e('v_and_b32 v3, 15, v1')
    e('v_lshrrev_b32 v4, 4, v1')
    e('v_lshlrev_b32 v5, 4, v1')
    if side:
        e(f's_cmp_ge_u32 s2, {NMAIN}')
        e(f's_cbranch_scc1 {name}_side')
    e('s_and_b32 s23, s2, 31')
    e('s_lshr_b32 s24, s2, 5')
    e('s_and_b32 s25, s22, 1')
    e('s_lshr_b32 s26, s22, 1')
    e('v_mul_u32_u24 v6, 73728, v3\nv_lshl_add_u32 v6, v4, 4, v6')
    e('s_mul_i32 s27, s23, 2304')
    e('s_mul_i32 s28, s22, 192\ns_add_u32 s27, s27, s28')
    e('s_mul_i32 s29, s22, 3072')
    e('s_waitcnt lgkmcnt(0)')
    srd_ws(e, WS, 4, WS_END)
    srd_ws(e, XS, 6, S*D*2)
    for c in range(3):
        for mt in range(4):
            si, p = mt >> 1, mt & 1
            e(f's_add_u32 s30, s27, {si*1152 + p*16*73728 + 64*c}')
            e(f's_add_u32 m0, s29, {(mt*18 + c)*1024}\ns_nop 0')
            e.vm(f'buffer_load_dwordx4 v6, s[{XS}:{XS+3}], s30 offen lds', 'X')
    MB = 16
    T0 = 232
    e('s_mul_i32 s31, s24, 48\ns_lshl_b32 s32, s26, 4\ns_add_u32 s31, s31, s32')
    e(f'v_add_u32 v7, s31, v3')
    e(f'v_cvt_f32_u32 v{T0}, v7')
    e(f'v_cvt_f32_u32 v{T0+1}, v4\nv_mul_f32 v{T0+1}, {lit(8.0)}, v{T0+1}')
    e(f'v_cmp_eq_u32 vcc, 0, v7\nv_mov_b32 v{T0+2}, {lit(288.0)}\nv_mov_b32 v{T0+3}, {lit(0.25)}')
    e(f'v_cndmask_b32 v{T0+2}, v{T0}, v{T0+2}, vcc\nv_cndmask_b32 v{T0+3}, v{T0+3}, 0, vcc' .replace(f'v_cndmask_b32 v{T0+3}, v{T0+3}, 0, vcc', f'v_mov_b32 v{T0+4}, 0\nv_cndmask_b32 v{T0+3}, v{T0+3}, v{T0+4}, vcc'))
    ONES = 160
    for r in range(4): e(f'v_mov_b32 v{ONES+r}, 0x3f803f80')
    EP = 164
    par = {}
    for c in range(2):
        kap = T0 if c == 0 else T0+2
        B_, A_, DA_, TC = T0+5+4*c, T0+6+4*c, T0+7+4*c, T0+8+4*c
        par[c] = (B_, A_, DA_, TC)
        e(f'v_mul_f32 v{B_}, {lit(1.0/576)}, v{kap}')
        e(f'v_mul_f32 v{A_}, v{B_}, v{T0+1}')
        if c == 1: e(f'v_add_f32 v{A_}, v{A_}, v{T0+3}')
        e(f'v_fract_f32 v{A_}, v{A_}')
        e(f'v_mul_f32 v{DA_}, {lit(32.0)}, v{B_}\nv_fract_f32 v{DA_}, v{DA_}')
        e(f'v_cos_f32 v{TC}, v{B_}\ns_nop 0\nv_add_f32 v{TC}, v{TC}, v{TC}')
    CH = T0+13
    for q in range(18):
        for c in range(2):
            B_, A_, DA_, TC = par[c]
            if q: e(f'v_add_f32 v{A_}, v{A_}, v{DA_}\nv_fract_f32 v{A_}, v{A_}')
            e(f'v_add_f32 v{CH+8}, v{A_}, v{B_}')
            e(f'v_cos_f32 v{CH}, v{A_}\nv_cos_f32 v{CH+1}, v{CH+8}')
            e('s_nop 0')
            for j in range(2, 8): e(f'v_fma_f32 v{CH+j}, v{TC}, v{CH+j-1}, -v{CH+j-2}')
            m = MB + c*72 + 4*q
            for j in range(4): e(f'v_cvt_pk_bf16_f32 v{m+j}, v{CH+2*j}, v{CH+2*j+1}')
            d = EP + 4*c
            cc = '0' if q == 0 else f'v[{d}:{d+3}]'
            e(f'v_mfma_f32_16x16x32_bf16 v[{d}:{d+3}], v[{ONES}:{ONES+3}], v[{m}:{m+3}], {cc}')
    FA = 172
    def fa(ft, p, c): return FA + ((ft*2+p)*2+c)*4
    e('s_lshl_b32 s33, s23, 1\ns_add_u32 s33, s33, s25')
    e(f'v_cvt_f32_u32 v{T0}, v3')
    e(f'v_cvt_f32_u32 v{T0+1}, v4\nv_cvt_f32_u32 v{T0+2}, s33')
    e(f'v_fmamk_f32 v{T0+1}, v{T0+1}, {lit(256.0)}, v{T0+2}')
    for ft in range(2):
        if ft: e(f'v_add_f32 v{T0+3}, {lit(16.0)}, v{T0}')
        else: e(f'v_mov_b32 v{T0+3}, v{T0}')
        e(f'v_mul_f32 v{T0+3}, {lit(1.0/2048)}, v{T0+3}')
        e(f'v_mul_f32 v{T0+4}, v{T0+3}, v{T0+1}')
        for p in range(2):
            for r in range(4):
                kk = 64*(16*p + r)
                a = T0+5
                if kk: e(f'v_fmamk_f32 v{a}, v{T0+3}, {lit(float(kk))}, v{T0+4}')
                else: e(f'v_mov_b32 v{a}, v{T0+4}')
                e(f'v_cos_f32 v{T0+6}, v{a}\nv_sin_f32 v{T0+7}, v{a}')
                e(f'v_cvt_pk_bf16_f32 v{fa(ft,p,0)+r}, v{T0+6}, v{T0+7}')
                e(f'v_cvt_pk_bf16_f32 v{fa(ft,p,1)+r}, -v{T0+7}, v{T0+6}')
    e.wait_vm('X'); e('s_barrier')
    e('v_add_u32 v8, 36864, v5')
    def lds_frag(mt, q):
        idx = mt*18 + q
        return (5, idx*1024) if idx < 36 else (8, (idx-36)*1024)
    e('s_cmp_ge_u32 s22, 4')
    e(f's_cbranch_scc1 {name}_nostat')
    e('s_mul_i32 s34, s22, 18432\nv_add_u32 v9, s34, v5')
    SB = 204
    e('s_mov_b32 s35, 0x3f803f80')
    for k in range(4): e(f'v_mov_b32 v{228+k}, 0')
    for q in range(6): e.ds(f'ds_read_b128 v[{SB+4*q}:{SB+4*q+3}], v9 offset:{q*1024}', ('S', q))
    for q in range(18):
        e.wait_ds(('S', q))
        b = SB + 4*(q % 6)
        for k in range(4):
            e(f'v_dot2_f32_bf16 v{228+(k&1)}, v{b+k}, s35, v{228+(k&1)}')
            e(f'v_dot2_f32_bf16 v{230+(k&1)}, v{b+k}, v{b+k}, v{230+(k&1)}')
        if q + 6 < 18: e.ds(f'ds_read_b128 v[{b}:{b+3}], v9 offset:{(q+6)*1024}', ('S', q+6))
    e('v_add_f32 v228, v228, v229\nv_add_f32 v230, v230, v231')
    for reg in (228, 230):
        e(f'v_mov_b32 v{reg+1}, v{reg}\ns_nop 1\nv_permlane32_swap_b32 v{reg}, v{reg+1}\nv_add_f32 v{reg}, v{reg}, v{reg+1}')
        e(f'v_mov_b32 v{reg+1}, v{reg}\ns_nop 1\nv_permlane16_swap_b32 v{reg}, v{reg+1}\nv_add_f32 v{reg}, v{reg}, v{reg+1}')
    stats_tail(e, 228, 230, T0, 576)
    e(f's_lshl_b32 s36, s22, 7\nv_lshlrev_b32 v10, 3, v3\nv_add_u32 v10, s36, v10\nv_add_u32 v10, 73728, v10')
    e(f'v_mov_b32 v{T0+4}, v{T0+1}\nv_mov_b32 v{T0+5}, v{T0+2}')
    e.ds(f'ds_write_b64 v10, v[{T0+4}:{T0+5}]')
    e.wait_all_ds()
    e.label(f'{name}_nostat')
    e.lq = []
    ACC = 204
    AB = 220
    XB = 172 - 0
    XF = 236
    XF = 208 + 0
    return e, locals()

def gen_k1_full(name='k1_kernel', side=True):
    e, L = gen_k1(name, side)
    WS, XS, WRS, WIS = L['WS'], L['XS'], L['WRS'], L['WIS']
    MB, EP, FA, fa, T0, lds_frag, NMAIN = L['MB'], L['EP'], L['FA'], L['fa'], L['T0'], L['lds_frag'], L['NMAIN']
    ACC = 204
    XF = 220
    e('s_mul_i32 s34, s25, 36864\nv_add_u32 v9, s34, v5')
    def rd(q):
        for p in range(2):
            b = XF + ((q % 3)*2 + p)*4
            e.ds(f'ds_read_b128 v[{b}:{b+3}], v9 offset:{(p*18+q)*1024}', ('A', q, p))
    rd(0); rd(1)
    for q in range(18):
        e.wait_ds(('A', q, 1))
        for p in range(2):
            b = XF + ((q % 3)*2 + p)*4
            for c in range(2):
                a = ACC + (p*2+c)*4
                m = MB + c*72 + 4*q
                cc = '0' if q == 0 else f'v[{a}:{a+3}]'
                e(f'v_mfma_f32_16x16x32_bf16 v[{a}:{a+3}], v[{b}:{b+3}], v[{m}:{m+3}], {cc}')
        if q + 2 < 18: rd(q+2)
    e('s_barrier')
    ST = 16
    e('v_lshlrev_b32 v10, 5, v4')
    e('s_lshl_b32 s36, s25, 8\nv_add_u32 v10, s36, v10\nv_add_u32 v10, 73728, v10')
    for p in range(2):
        e.ds(f'ds_read_b128 v[{ST+8*p}:{ST+8*p+3}], v10 offset:{p*128}', ('T', p))
        e.ds(f'ds_read_b128 v[{ST+8*p+4}:{ST+8*p+7}], v10 offset:{p*128+16}', ('T', p))
    BF = 32
    for p in range(2):
        e.wait_ds(('T', p))
        for r in range(4):
            m, ri = ST + 8*p + 2*r, ST + 8*p + 2*r + 1
            for c in range(2):
                a = ACC + (p*2+c)*4 + r
                e(f'v_fma_f32 v{a}, -v{m}, v{EP+4*c}, v{a}\nv_mul_f32 v{a}, v{a}, v{ri}')
            e(f'v_cvt_pk_bf16_f32 v{BF+4*p+r}, v{ACC+(p*2)*4+r}, v{ACC+(p*2+1)*4+r}')
    D2 = 40
    for p in range(2):
        for ft in range(2):
            for c in range(2):
                d = D2 + (ft*2+c)*4
                cc = '0' if p == 0 else f'v[{d}:{d+3}]'
                e(f'v_mfma_f32_16x16x32_bf16 v[{d}:{d+3}], v[{fa(ft,p,c)}:{fa(ft,p,c)+3}], v[{BF+4*p}:{BF+4*p+3}], {cc}')
    e('v_lshlrev_b32 v11, 7, v3\nv_lshl_add_u32 v11, v4, 4, v11')
    e(f's_mul_i32 s37, s33, 36864\ns_lshl_b32 s38, s31, 7\ns_add_u32 s37, s37, s38\ns_add_u32 s37, s37, {OFF_T}')
    OB = 56
    for ft in range(2):
        for r in range(4):
            e(f'v_cvt_pk_bf16_f32 v{OB+4*ft+r}, v{D2+(ft*2)*4+r}, v{D2+(ft*2+1)*4+r}')
        e.vm(f'buffer_store_dwordx4 v[{OB+4*ft}:{OB+4*ft+3}], v11, s[{WS}:{WS+3}], s37 offen offset:{ft*64}')
    e(f's_branch {name}_end')
    if side:
        e.label(f'{name}_side')
        e.vq = []; e.lq = []
        e(f's_sub_u32 s23, s2, {NMAIN}')
        e('s_waitcnt lgkmcnt(0)')
        srd_ws(e, WS, 4, WS_END)
        srd_ws(e, WRS, 20, S*289*2)
        srd_ws(e, WIS, 42, S*289*2)
        e('s_mul_i32 s24, s23, 18496')
        for arr, srd in ((0, WRS), (1, WIS)):
            for t in range(4):
                if t == 3:
                    e(f's_cmp_lg_u32 s22, 0\ns_cbranch_scc1 {name}_skip{arr}')
                e(f's_lshl_b32 s25, s22, 10\ns_add_u32 s25, s25, {t*6*1024}')
                e(f's_add_u32 s26, s25, s24')
                e(f's_add_u32 m0, s25, {arr*19456}\ns_nop 0')
                e.vm(f'buffer_load_dwordx4 v5, s[{srd}:{srd+3}], s26 offen lds', 'D')
                if t == 3: e.label(f'{name}_skip{arr}')
        e(f's_cmp_lg_u32 s22, 5\ns_cbranch_scc1 {name}_nopq')
        e('v_cmp_gt_u32 vcc, 32, v1\ns_and_saveexec_b64 s[30:31], vcc')
        e('s_lshl_b32 s27, s23, 5\nv_add_u32 v6, s27, v1')
        e('v_sub_u32 v7, 0, v6\nv_and_b32 v7, 2047, v7')
        e('v_mul_u32_u24 v8, 578, v6\nv_mul_u32_u24 v9, 578, v7')
        k = 16
        for vo in (8, 9):
            for col in (0, 576):
                e.vm(f'buffer_load_ushort v{k}, v{vo}, s[{WRS}:{WRS+3}], 0 offen offset:{col}', 'PQ'); k += 1
                e.vm(f'buffer_load_ushort v{k}, v{vo}, s[{WIS}:{WIS+3}], 0 offen offset:{col}', 'PQ'); k += 1
        e.wait_vm('PQ')
        for k in range(16, 24): e(f'v_lshlrev_b32 v{k}, 16, v{k}')
        e('v_add_f32 v24, v16, v20\nv_sub_f32 v25, v17, v21\nv_add_f32 v26, v18, v22\nv_sub_f32 v27, v19, v23')
        e('v_add_f32 v28, v24, v26\nv_add_f32 v29, v25, v27\nv_sub_f32 v30, v24, v26\nv_sub_f32 v31, v25, v27')
        for k in range(28, 32): e(f'v_mul_f32 v{k}, {lit(0.25)}, v{k}')
        e('v_cvt_pk_bf16_f32 v32, v28, v29\nv_cvt_pk_bf16_f32 v33, v30, v31')
        e('v_lshlrev_b32 v10, 2, v6')
        e(f's_mov_b32 s28, {OFF_WT}\ns_mov_b32 s29, {OFF_QT}')
        e.vm(f'buffer_store_dword v32, v10, s[{WS}:{WS+3}], s28 offen')
        e.vm(f'buffer_store_dword v33, v10, s[{WS}:{WS+3}], s29 offen')
        e('s_mov_b64 exec, s[30:31]')
        e.label(f'{name}_nopq')
        e('s_waitcnt vmcnt(0)\ns_barrier'); e.vq = []
        e('v_and_b32 v6, 31, v1\nv_lshrrev_b32 v7, 5, v1')
        e('s_lshl_b32 s27, s22, 1\nv_add_u32 v8, s27, v7')
        e('v_mul_u32_u24 v9, 289, v6\nv_add_u32 v9, v9, v8\nv_lshlrev_b32 v9, 1, v9')
        e('v_lshlrev_b32 v10, 13, v7\nv_lshl_add_u32 v10, v6, 2, v10')
        e('v_cmp_eq_u32 vcc, 0, v8\nv_mov_b32 v11, 0x7fffff00\ns_nop 0\nv_cndmask_b32 v11, v10, v11, vcc')
        e(f's_lshl_b32 s28, s23, 7\ns_lshl_b32 s29, s22, 14\ns_add_u32 s28, s28, s29\ns_add_u32 s28, s28, {OFF_WT}')
        for m0_ in range(0, 24, 6):
            for m in range(m0_, m0_+6):
                r = 16 + (m % 6)
                e.ds(f'ds_read_u16 v{r}, v9 offset:{m*24}', ('G', m))
                e.ds(f'ds_read_u16 v{r+6}, v9 offset:{19456 + m*24}', ('G', m))
            for m in range(m0_, m0_+6):
                r = 16 + (m % 6)
                e.wait_ds(('G', m))
                e(f'v_lshl_or_b32 v{r}, v{r+6}, 16, v{r}')
                e(f's_add_u32 s30, s28, {m*12*8192}')
                e.vm(f'buffer_store_dword v{r}, v{11 if m == 0 else 10}, s[{WS}:{WS+3}], s30 offen')
            e('s_nop 1')
    e.label(f'{name}_end')
    e('s_endpgm')
    return kernel_header(name) + e.text(verbose=True) + kernel_desc(name, 256)

if __name__ == '__main__':
    t = gen_k1_full()
    open('k1.s', 'w').write('; @launch kernel=k1_kernel grid=(256,1,1) block=(384,1,1) lds=74240\n.amdgcn_target "amdgcn-amd-amdhsa--gfx950"\n' + t)
```

```python
from asmlib import *
from layout import *
from k4 import srd_ws

def gen_k2(name='k2_kernel', side=True):
    e = Emit()
    WS = 8; W1S = 12; W2S = 16
    NMAIN = 72; NSIDE = 144
    e(f's_cmp_ge_u32 s2, {NMAIN + (NSIDE if side else 0)}')
    e(f's_cbranch_scc1 {name}_end')
    e('s_load_dwordx2 s[4:5], s[0:1], 80')
    e('s_load_dwordx2 s[6:7], s[0:1], 32')
    e('s_load_dwordx2 s[20:21], s[0:1], 48')
    e('v_lshrrev_b32 v2, 6, v0')
    e('v_and_b32 v1, 63, v0')
    e('v_readfirstlane_b32 s22, v2')
    e('v_lshlrev_b32 v5, 4, v1')
    if side:
        e(f's_cmp_ge_u32 s2, {NMAIN}')
        e(f's_cbranch_scc1 {name}_side')
    e('v_and_b32 v3, 31, v1')
    e('v_lshrrev_b32 v4, 5, v1')
    e('s_lshl_b32 s23, s2, 2\ns_add_u32 s23, s23, s22')
    e(f'v_mul_u32_u24 v6, {4*36864}, v4\nv_lshl_add_u32 v6, v3, 2, v6')
    e(f's_lshl_b32 s24, s23, 7')
    e('v_lshlrev_b32 v7, 9, v4\nv_lshl_add_u32 v7, v3, 2, v7')
    e(f's_lshl_b32 s25, s23, 13\ns_add_u32 s25, s25, {OFF_WT}\ns_add_u32 s26, s25, 4096')
    e('s_waitcnt lgkmcnt(0)')
    srd_ws(e, WS, 4, WS_END)
    TB = 16
    WB = 48
    e(f's_add_u32 s27, s24, {OFF_T}')
    for st in range(8):
        t, g4 = st >> 2, st & 3
        for ii in range(4):
            s2 = 32*t + 8*g4 + ii
            e(f's_add_u32 s28, s27, {s2*36864}')
            e.vm(f'buffer_load_dword v{TB+st*4+ii}, v6, s[{WS}:{WS+3}], s28 offen', ('T', st))
    for m2 in range(2):
        for g4 in range(4):
            for ii in range(4):
                row = 8*g4 + ii
                e.vm(f'buffer_load_dword v{WB+(m2*4+g4)*4+ii}, v7, s[{WS}:{WS+3}], s{25+m2} offen offset:{row*128}', ('W', m2))
    T0 = 240
    e('s_lshr_b32 s29, s22, 1\ns_and_b32 s30, s22, 1')
    e('s_lshl_b32 s31, s29, 5')
    e(f'v_add_u32 v{T0}, s31, v3\nv_cvt_f32_u32 v{T0}, v{T0}\nv_mul_f32 v{T0}, {lit(1.0/64)}, v{T0}')
    e(f's_lshl_b32 s32, s30, 5\nv_lshl_add_u32 v{T0+1}, v4, 2, s32\nv_cvt_f32_u32 v{T0+1}, v{T0+1}')
    e(f'v_mul_f32 v{T0+1}, v{T0}, v{T0+1}')
    e(f's_lshl_b32 s33, s29, 14\ns_lshl_b32 s34, s30, 12\ns_add_u32 s33, s33, s34')
    e('v_add_u32 v8, s33, v5')
    FR = 80
    for g4 in range(4):
        fr = FR + (g4 & 1)*8
        for ii in range(4):
            kk = 8*g4 + ii
            a = T0+2
            if kk: e(f'v_fmamk_f32 v{a}, v{T0}, {lit(float(kk))}, v{T0+1}')
            else: e(f'v_mov_b32 v{a}, v{T0+1}')
            e(f'v_cos_f32 v{T0+3}, v{a}\nv_sin_f32 v{T0+4}, v{a}')
            e(f'v_cvt_pk_bf16_f32 v{fr+ii}, v{T0+3}, v{T0+4}')
            e(f'v_cvt_pk_bf16_f32 v{fr+4+ii}, -v{T0+4}, v{T0+3}')
        e.ds(f'ds_write_b128 v8, v[{fr}:{fr+3}] offset:{g4*1024}')
        e.ds(f'ds_write_b128 v8, v[{fr+4}:{fr+7}] offset:{8*1024 + g4*1024}')
    e.wait_all_ds(); e('s_barrier')
    AF = 80
    def dft(D, B, pre=None, post=None):
        seq = [(m2, c, st) for m2 in range(2) for st in range(8) for c in range(2)]
        def rd(i):
            m2, c, st = seq[i]
            b = AF + (i % 8)*4
            e.ds(f'ds_read_b128 v[{b}:{b+3}], v5 offset:{((m2*2+c)*8+st)*1024}', ('A', i))
        LA = 6
        for i in range(LA): rd(i)
        for i, (m2, c, st) in enumerate(seq):
            if pre: pre(i, m2, c, st)
            e.wait_ds(('A', i))
            b = AF + (i % 8)*4
            d = D + (m2*2+c)*16
            cc = '0' if st == 0 else f'v[{d}:{d+15}]'
            e(f'v_mfma_f32_32x32x16_bf16 v[{d}:{d+15}], v[{b}:{b+3}], v[{B+st*4}:{B+st*4+3}], {cc}')
            if i + LA < len(seq): rd(i + LA)
            if post: post(i, m2, c, st)
    Z = 112
    def pre_f(i, m2, c, st):
        if m2 == 0 and c == 0: e.wait_vm(('T', st))
    dft(Z, TB, pre=pre_f)
    e.wait_vm(('W', 1))
    e('s_cmp_eq_u32 s23, 0')
    e(f's_cbranch_scc1 {name}_k0')
    TM = 240
    for m2 in range(2):
        for r in range(16):
            zr = Z + (m2*2)*16 + r; zi = Z + (m2*2+1)*16 + r
            w = WB + m2*16 + r
            tm = TM + (r & 1)*4
            e(f'v_lshlrev_b32 v{tm}, 16, v{w}\nv_and_b32 v{tm+1}, 0xffff0000, v{w}')
            e(f'v_mul_f32 v{tm+2}, v{zr}, v{tm}\nv_mul_f32 v{tm+3}, v{zr}, v{tm+1}')
            e(f'v_fma_f32 v{tm+2}, -v{zi}, v{tm+1}, v{tm+2}\nv_fma_f32 v{tm+3}, v{zi}, v{tm}, v{tm+3}')
            e(f'v_cvt_pk_bf16_f32 v{TB+m2*16+r}, v{tm+2}, -v{tm+3}')
    e.label(f'{name}_wdone')
    D2 = 176
    dft(D2, TB)
    e(f's_add_u32 s27, s24, {OFF_V}')
    for m2 in range(2):
        for r in range(16):
            g4, ii = r >> 2, r & 3
            s2 = 32*m2 + 8*g4 + ii
            o = WB + m2*16 + r
            e(f'v_cvt_pk_bf16_f32 v{o}, v{D2+(m2*2)*16+r}, -v{D2+(m2*2+1)*16+r}')
            e(f's_add_u32 s28, s27, {s2*36864}')
            e.vm(f'buffer_store_dword v{o}, v6, s[{WS}:{WS+3}], s28 offen')
    e(f's_branch {name}_end')
    e.label(f'{name}_k0')
    e.lq = []
    QB = 80
    e(f's_mov_b32 s35, {OFF_QT}\ns_add_u32 s36, s35, 4096')
    e.vq = []
    for m2 in range(2):
        for r in range(16):
            row = 8*(r >> 2) + (r & 3)
            e.vm(f'buffer_load_dword v{QB+m2*16+r}, v7, s[{WS}:{WS+3}], s{35+m2} offen offset:{row*128}', 'Q')
    e('v_lshlrev_b32 v9, 3, v3\nv_lshl_add_u32 v9, v4, 10, v9\nv_add_u32 v10, 32768, v9')
    for m2 in range(2):
        for r in range(16):
            row = 32*m2 + 8*(r >> 2) + (r & 3)
            e(f'v_mov_b32 v{TM}, v{Z+(m2*2)*16+r}\nv_mov_b32 v{TM+1}, v{Z+(m2*2+1)*16+r}')
            e.ds(f'ds_write_b64 v10, v[{TM}:{TM+1}] offset:{row*256}')
    e.wait_all_ds()
    e.wait_vm('Q')
    for m2 in range(2):
        for r in range(16):
            row = 32*m2 + 8*(r >> 2) + (r & 3)
            zr = Z + (m2*2)*16 + r; zi = Z + (m2*2+1)*16 + r
            p = WB + m2*16 + r; q = QB + m2*16 + r
            e(f'v_add_u32 v11, {row*256}, v9\nv_sub_u32 v11, 0, v11\nv_and_b32 v11, 16383, v11\nv_add_u32 v11, 32768, v11')
            e.ds(f'ds_read_b64 v[{TM}:{TM+1}], v11', 'zm')
            e(f'v_lshlrev_b32 v{TM+2}, 16, v{p}\nv_and_b32 v{TM+3}, 0xffff0000, v{p}')
            e(f'v_lshlrev_b32 v{TM+4}, 16, v{q}\nv_and_b32 v{TM+5}, 0xffff0000, v{q}')
            e(f'v_mul_f32 v{TM+6}, v{zr}, v{TM+2}\nv_mul_f32 v{TM+7}, v{zr}, v{TM+3}')
            e(f'v_fma_f32 v{TM+6}, -v{zi}, v{TM+3}, v{TM+6}\nv_fma_f32 v{TM+7}, v{zi}, v{TM+2}, v{TM+7}')
            e.wait_ds('zm')
            e(f'v_fma_f32 v{TM+6}, v{TM}, v{TM+4}, v{TM+6}\nv_fma_f32 v{TM+6}, v{TM+1}, v{TM+5}, v{TM+6}')
            e(f'v_fma_f32 v{TM+7}, v{TM}, v{TM+5}, v{TM+7}\nv_fma_f32 v{TM+7}, -v{TM+1}, v{TM+4}, v{TM+7}')
            e(f'v_cvt_pk_bf16_f32 v{TB+m2*16+r}, v{TM+6}, -v{TM+7}')
    e('s_nop 1')
    e(f's_branch {name}_wdone')
    if side:
        e.label(f'{name}_side')
        e.vq = []; e.lq = []
        e(f's_sub_u32 s23, s2, {NMAIN}')
        e('s_and_b32 s24, s23, 7')
        e('s_lshr_b32 s25, s23, 3\ns_lshl_b32 s25, s25, 2\ns_add_u32 s25, s25, s22')
        e(f's_mul_hi_u32 s26, s25, {(2**32+17)//18}')
        e('s_mul_i32 s27, s26, 18\ns_sub_u32 s27, s25, s27')
        e('s_waitcnt lgkmcnt(0)')
        srd_ws(e, WS, 4, WS_END)
        srd_ws(e, W1S, 6, D*F*2)
        srd_ws(e, W2S, 20, D*F*2)
        e('s_mul_i32 s28, s27, 294912\ns_mul_i32 s29, s24, 1152\ns_add_u32 s28, s28, s29\ns_mul_i32 s29, s26, 288\ns_add_u32 s28, s28, s29')
        e('s_and_b32 s30, s27, 1\ns_mul_i32 s30, s30, 288\ns_lshr_b32 s31, s27, 1\ns_lshl_b32 s31, s31, 4\ns_add_u32 s30, s30, s31')
        e('s_mul_i32 s31, s24, 576\ns_add_u32 s30, s30, s31\ns_mul_i32 s30, s30, 1152\ns_add_u32 s30, s30, s29')
        e('s_mul_i32 s32, s22, 18432')
        for m in range(9):
            e(f'v_add_u32 v6, {64*m}, v1')
            e(f'v_mul_u32_u24 v7, 3641, v6\nv_lshrrev_b32 v7, 16, v7')
            e('v_mul_u32_u24 v8, 18, v7\nv_sub_u32 v8, v6, v8\nv_lshlrev_b32 v8, 4, v8')
            e(f'v_mul_u32_u24 v9, 9216, v7\nv_add_u32 v{16+m}, v9, v8')
            e('v_cmp_le_u32 vcc, 16, v7\nv_mov_b32 v10, 128\ns_nop 0\nv_cndmask_b32 v10, 0, v10, vcc\nv_add_u32 v10, v10, v7')
            e(f'v_mul_u32_u24 v10, 1152, v10\nv_add_u32 v{32+m}, v10, v8')
        for m in range(9):
            e(f's_add_u32 m0, s32, {m*1024}\ns_nop 0')
            e.vm(f'buffer_load_dwordx4 v{16+m}, s[{W1S}:{W1S+3}], s28 offen lds', 'D1')
        for m in range(9):
            e(f's_add_u32 m0, s32, {9216 + m*1024}\ns_nop 0')
            e.vm(f'buffer_load_dwordx4 v{32+m}, s[{W2S}:{W2S+3}], s30 offen lds', 'D2')
        e('v_lshrrev_b32 v6, 2, v1\nv_mul_u32_u24 v6, 288, v6\nv_and_b32 v7, 3, v1\nv_lshl_add_u32 v6, v7, 3, v6\nv_add_u32 v6, s32, v6')
        e(f's_lshl_b32 s33, s24, 2\ns_add_u32 s33, s33, s26\ns_mul_i32 s33, s33, {162*1024}')
        e(f's_lshl_b32 s34, s27, 10\ns_add_u32 s34, s34, s33\ns_add_u32 s34, s34, {OFF_W1P}')
        e(f's_mul_i32 s35, s27, 9216\ns_add_u32 s35, s35, s33\ns_add_u32 s35, s35, {OFF_W2P}')
        for which, tag in ((0, 'D1'), (1, 'D2')):
            e.wait_vm(tag)
            for p in range(9):
                b = 48 + (which*9+p)*4
                e.ds(f'ds_read_b64_tr_b16 v[{b}:{b+1}], v6 offset:{which*9216 + p*32}', ('R', which, p))
                e.ds(f'ds_read_b64_tr_b16 v[{b+2}:{b+3}], v6 offset:{which*9216 + p*32 + 16*288}', ('R', which, p))
            for p in range(9):
                b = 48 + (which*9+p)*4
                e.wait_ds(('R', which, p))
                if which == 0:
                    e(f's_add_u32 s36, s34, {p*18*1024}')
                else:
                    e(f's_add_u32 s36, s35, {p*1024}')
                e.vm(f'buffer_store_dwordx4 v[{b}:{b+3}], v5, s[{WS}:{WS+3}], s36 offen')
    e.label(f'{name}_end')
    e('s_endpgm')
    return kernel_header(name) + e.text(verbose=True) + kernel_desc(name, 256)

if __name__ == '__main__':
    t = gen_k2()
    open('k2.s', 'w').write('; @launch kernel=k2_kernel grid=(216,1,1) block=(256,1,1) lds=73728\n.amdgcn_target "amdgcn-amd-amdhsa--gfx950"\n' + t)
```

```python
from asmlib import *
from layout import *
from k4 import srd_ws

def stats_tail(e, S1, S2, T, n, emit=None):
    E = emit or e
    E(f'v_mul_f32 v{S1}, {lit(1.0/n)}, v{S1}')
    E(f'v_mul_f32 v{S2}, {lit(1.0/n)}, v{S2}')
    E(f'v_fma_f32 v{S2}, -v{S1}, v{S1}, v{S2}')
    E(f'v_max_f32 v{S2}, 0, v{S2}')
    E(f'v_cvt_pk_bf16_f32 v{T}, v{S1}, v{S2}')
    E(f'v_lshlrev_b32 v{T+1}, 16, v{T}')
    E(f'v_and_b32 v{T+2}, 0xffff0000, v{T}')
    E(f'v_add_f32 v{T+2}, {lit(1e-5)}, v{T+2}')
    E(f'v_cvt_pk_bf16_f32 v{T+2}, v{T+2}, v{T+2}')
    E(f'v_and_b32 v{T+2}, 0xffff0000, v{T+2}')
    E(f'v_sqrt_f32 v{T+2}, v{T+2}')
    E(f'v_cvt_pk_bf16_f32 v{T+2}, v{T+2}, v{T+2}')
    E(f'v_and_b32 v{T+2}, 0xffff0000, v{T+2}')
    E(f'v_rcp_f32 v{T+2}, v{T+2}')

def gen_k3(name='k3_kernel', side=True):
    e = Emit()
    WS = 8; XS = 12; B1S = 16
    NMAIN = 192; NSIDE = 48
    e(f's_cmp_ge_u32 s2, {NMAIN + (NSIDE if side else 0)}')
    e(f's_cbranch_scc1 {name}_end')
    e('s_load_dwordx2 s[4:5], s[0:1], 80')
    e('s_load_dwordx2 s[6:7], s[0:1], 0')
    e('s_load_dwordx2 s[20:21], s[0:1], 40')
    e('v_lshrrev_b32 v2, 6, v0')
    e('v_and_b32 v1, 63, v0')
    e('v_readfirstlane_b32 s22, v2')
    e('v_and_b32 v3, 15, v1')
    e('v_lshrrev_b32 v4, 4, v1')
    e('v_lshlrev_b32 v5, 4, v1')
    if side:
        e(f's_cmp_ge_u32 s2, {NMAIN}')
        e(f's_cbranch_scc1 {name}_side')
    e('s_and_b32 s23, s2, 31')
    e('s_lshr_b32 s24, s2, 5')
    e('s_cmp_ge_u32 s22, 3\ns_cselect_b32 s25, 1, 0')
    e('s_mul_i32 s26, s25, 3\ns_sub_u32 s26, s22, s26')
    e('s_lshl_b32 s27, s23, 1\ns_add_u32 s27, s27, s25')
    e(f's_mul_i32 s28, s27, 36864\ns_mul_i32 s29, s26, {6*2048}\ns_add_u32 s28, s28, s29\ns_add_u32 s28, s28, {OFF_V}')
    e('v_lshlrev_b32 v6, 7, v3\nv_lshl_add_u32 v6, v4, 4, v6')
    e('v_mov_b32 v7, 0\nv_lshlrev_b32 v8, 2, v0\nv_add_u32 v8, 73728, v8')
    e('v_cmp_gt_u32 vcc, 128, v0\ns_and_saveexec_b64 s[30:31], vcc')
    e(f's_cbranch_execz {name}_nz')
    e.ds('ds_write_b32 v8, v7')
    e.label(f'{name}_nz')
    e('s_mov_b64 exec, s[30:31]')
    e('s_waitcnt lgkmcnt(0)'); e.lq = []
    srd_ws(e, WS, 4, WS_END)
    srd_ws(e, XS, 6, S*D*2)
    VA = 16
    for kl in range(6):
        for p in range(2):
            b = VA + (kl*2+p)*4
            e.vm(f'buffer_load_dwordx4 v[{b}:{b+3}], v6, s[{WS}:{WS+3}], s28 offen offset:{(kl % 2)*2048 + p*64}', ('V', kl))
        if kl % 2 == 1: e('s_add_u32 s28, s28, 4096')
    XR = 64
    e('v_mul_u32_u24 v9, 73728, v3\nv_lshl_add_u32 v9, v4, 3, v9')
    e('s_mul_i32 s32, s24, 192\ns_lshl_b32 s33, s22, 5\ns_add_u32 s32, s32, s33')
    e('s_mul_i32 s33, s23, 2304\ns_add_u32 s32, s32, s33')
    for mt in range(4):
        si, nt = mt >> 1, mt & 1
        e(f's_add_u32 s33, s32, {si*1152 + nt*16*73728}')
        e.vm(f'buffer_load_dwordx2 v[{XR+2*mt}:{XR+2*mt+1}], v9, s[{XS}:{XS+3}], s33 offen', ('X', mt))
    GB = 72
    def gb(nt, p, c): b = GB + ((nt*2+p)*2+c)*4; return b
    T0 = 240
    e(f'v_cvt_f32_u32 v{T0}, v3')
    e(f'v_cvt_f32_u32 v{T0+1}, v4')
    e(f'v_cvt_f32_u32 v{T0+2}, s27')
    e(f'v_mul_f32 v{T0+1}, 4.0, v{T0+1}')
    for nt in range(2):
        e(f'v_fmamk_f32 v{T0+3}, v{T0}, {lit(64.0)}, v{T0+2}')
        if nt: e(f'v_add_f32 v{T0+3}, {lit(1024.0)}, v{T0+3}')
        e(f'v_mul_f32 v{T0+3}, {lit(1.0/2048)}, v{T0+3}')
        e(f'v_mul_f32 v{T0+4}, v{T0+3}, v{T0+1}')
        for p in range(2):
            for r in range(4):
                kk = 16*p + r
                a = T0+5+r
                if kk: e(f'v_fmamk_f32 v{a}, v{T0+3}, {lit(float(kk))}, v{T0+4}')
                else: e(f'v_mov_b32 v{a}, v{T0+4}')
            for r in range(4):
                e(f'v_cos_f32 v{T0+9+(r&1)*2}, v{T0+5+r}')
                e(f'v_sin_f32 v{T0+10+(r&1)*2}, v{T0+5+r}')
                c, s = T0+9+(r&1)*2, T0+10+(r&1)*2
                e(f's_nop 0')
                e(f'v_cvt_pk_bf16_f32 v{gb(nt,p,0)+r}, v{c}, -v{s}')
                e(f'v_cvt_pk_bf16_f32 v{gb(nt,p,1)+r}, v{s}, v{c}')
    MA = 104
    e('s_mul_i32 s34, s24, 96\ns_lshl_b32 s35, s22, 4\ns_add_u32 s34, s34, s35')
    e(f'v_add_u32 v{T0}, s34, v3\nv_cvt_f32_u32 v{T0}, v{T0}')
    e(f'v_mul_f32 v{T0+2}, {lit(1.0/576)}, v{T0}')
    e(f'v_mul_f32 v{T0+3}, v{T0+2}, v{T0+1}\nv_fract_f32 v{T0+3}, v{T0+3}')
    e(f'v_mul_f32 v{T0+4}, {lit(16.0)}, v{T0+2}\nv_fract_f32 v{T0+4}, v{T0+4}')
    e(f'v_cos_f32 v{T0+5}, v{T0+2}\ns_nop 0\nv_add_f32 v{T0+5}, v{T0+5}, v{T0+5}')
    C0, S0, C1, S1, C2, S2_, C3, S3, A1 = (T0+6+i for i in range(9))
    for kt in range(18):
        if kt: e(f'v_add_f32 v{T0+3}, v{T0+3}, v{T0+4}\nv_fract_f32 v{T0+3}, v{T0+3}')
        e(f'v_add_f32 v{A1}, v{T0+3}, v{T0+2}')
        e(f'v_cos_f32 v{C0}, v{T0+3}\nv_sin_f32 v{S0}, v{T0+3}\nv_cos_f32 v{C1}, v{A1}\nv_sin_f32 v{S1}, v{A1}')
        e(f'v_cvt_pk_bf16_f32 v{MA+4*kt}, v{C0}, -v{S0}')
        e(f'v_fma_f32 v{C2}, v{T0+5}, v{C1}, -v{C0}')
        e(f'v_fma_f32 v{S2_}, v{T0+5}, v{S1}, -v{S0}')
        e(f'v_cvt_pk_bf16_f32 v{MA+4*kt+1}, v{C1}, -v{S1}')
        e(f'v_fma_f32 v{C3}, v{T0+5}, v{C2}, -v{C1}')
        e(f'v_fma_f32 v{S3}, v{T0+5}, v{S2_}, -v{S1}')
        e(f'v_cvt_pk_bf16_f32 v{MA+4*kt+2}, v{C2}, -v{S2_}')
        e(f'v_cvt_pk_bf16_f32 v{MA+4*kt+3}, v{C3}, -v{S3}')
    e(f'v_and_b32 v{T0}, 1, v3\nv_lshlrev_b32 v{T0}, 31, v{T0}\nv_or_b32 v{T0}, 0x3f003f00, v{T0}')
    e(f'v_cmp_eq_u32 vcc, 0, v4\ns_nop 1\nv_cndmask_b32 v{MA}, v{MA}, v{T0}, vcc')
    DA = 176
    PKA = 192
    e(f's_mul_i32 s36, s25, {2*18*1024}\ns_mul_i32 s37, s26, {6*1024}\ns_add_u32 s36, s36, s37')
    e('v_add_u32 v10, s36, v5')
    for kl in range(6):
        e.wait_vm(('V', kl))
        a0 = VA + kl*8
        for nt in range(2):
            for c in range(2):
                d = DA + (nt*2+c)*4
                e(f'v_mfma_f32_16x16x32_bf16 v[{d}:{d+3}], v[{a0}:{a0+3}], v[{gb(nt,0,c)}:{gb(nt,0,c)+3}], 0')
        for nt in range(2):
            for c in range(2):
                d = DA + (nt*2+c)*4
                e(f'v_mfma_f32_16x16x32_bf16 v[{d}:{d+3}], v[{a0+4}:{a0+7}], v[{gb(nt,1,c)}:{gb(nt,1,c)+3}], v[{d}:{d+3}]')
        for nt in range(2):
            pk = PKA + nt*4
            for r in range(4):
                e(f'v_cvt_pk_bf16_f32 v{pk+r}, v{DA+nt*8+r}, v{DA+nt*8+4+r}')
            e.ds(f'ds_write_b128 v10, v[{pk}:{pk+3}] offset:{(nt*18 + kl)*1024}')
    e.wait_all_ds(); e('s_barrier')
    ACC = 200
    BB = 16
    e('v_add_u32 v11, 36864, v5')
    def bread(kt, mt):
        idx = mt*18 + kt
        base, off = (5, idx*1024) if idx < 36 else (11, (idx-36)*1024)
        b = BB + ((kt % 3)*4 + mt)*4
        e.ds(f'ds_read_b128 v[{b}:{b+3}], v{base} offset:{off}', ('B', kt, mt))
    for kt in range(2):
        for mt in range(4): bread(kt, mt)
    for kt in range(18):
        e.wait_ds(('B', kt, 3))
        for mt in range(4):
            b = BB + ((kt % 3)*4 + mt)*4
            a = ACC + 4*mt
            c = '0' if kt == 0 else f'v[{a}:{a+3}]'
            e(f'v_mfma_f32_16x16x32_bf16 v[{a}:{a+3}], v[{MA+4*kt}:{MA+4*kt+3}], v[{b}:{b+3}], {c}')
            if kt + 2 < 18: bread(kt+2, mt)
    scale = 2.0/(2048*576)
    e.wait_vm(('X', 3))
    e('s_mul_i32 s38, s24, 6\ns_add_u32 s38, s38, s22')
    e('s_lshr_b32 s39, s38, 1\ns_lshl_b32 s39, s39, 10\ns_and_b32 s40, s38, 1\ns_lshl_b32 s40, s40, 3\ns_add_u32 s39, s39, s40')
    e(f's_mul_i32 s40, s23, 73728\ns_add_u32 s39, s39, s40\ns_add_u32 s39, s39, {OFF_H}')
    e('v_lshlrev_b32 v12, 3, v3\nv_add_u32 v12, 73728, v12')
    TE = 104
    for mt in range(4):
        a = ACC + 4*mt
        t = TE + mt*8
        for r in range(4): e(f'v_mul_f32 v{a+r}, {lit(scale)}, v{a+r}')
        e(f'v_cvt_pk_bf16_f32 v{t}, v{a}, v{a+1}\nv_cvt_pk_bf16_f32 v{t+1}, v{a+2}, v{a+3}')
        for k in range(2):
            e(f'v_lshlrev_b32 v{a+2*k}, 16, v{t+k}\nv_and_b32 v{a+2*k+1}, 0xffff0000, v{t+k}')
            x = XR + 2*mt + k
            e(f'v_lshlrev_b32 v{t+2}, 16, v{x}\nv_and_b32 v{t+3}, 0xffff0000, v{x}')
            e(f'v_add_f32 v{a+2*k}, v{a+2*k}, v{t+2}\nv_add_f32 v{a+2*k+1}, v{a+2*k+1}, v{t+3}')
        e(f'v_cvt_pk_bf16_f32 v{t+4}, v{a}, v{a+1}\nv_cvt_pk_bf16_f32 v{t+5}, v{a+2}, v{a+3}')
        e(f's_add_u32 s41, s39, {mt*18*1024}')
        e.vm(f'buffer_store_dwordx2 v[{t+4}:{t+5}], v5, s[{WS}:{WS+3}], s41 offen')
        e(f'v_dot2_f32_bf16 v{t+6}, v{t+4}, v{t+4}, 0\nv_dot2_f32_bf16 v{t+6}, v{t+5}, v{t+5}, v{t+6}')
        e(f's_mov_b32 s42, 0x3f803f80')
        e(f'v_dot2_f32_bf16 v{t+7}, v{t+4}, s42, 0\nv_dot2_f32_bf16 v{t+7}, v{t+5}, s42, v{t+7}')
        e.ds(f'ds_add_f32 v12, v{t+7} offset:{mt*128}')
        e.ds(f'ds_add_f32 v12, v{t+6} offset:{mt*128+4}')
    e.wait_all_ds(); e('s_barrier')
    e('v_cmp_gt_u32 vcc, 128, v0\ns_and_saveexec_b64 s[30:31], vcc')
    e(f's_cbranch_execz {name}_end')
    e.ds('ds_read_b32 v7, v8', 'st')
    e(f's_mul_i32 s43, s23, 6\ns_add_u32 s43, s43, s24\ns_lshl_b32 s43, s43, 9\ns_add_u32 s43, s43, {OFF_ST}')
    e('v_lshlrev_b32 v13, 2, v0')
    e.wait_ds('st')
    e.vm(f'buffer_store_dword v7, v13, s[{WS}:{WS+3}], s43 offen')
    e(f's_branch {name}_end')
    if side:
        e.label(f'{name}_side')
        e.vq = []; e.lq = []
        e(f's_sub_u32 s23, s2, {NMAIN}')
        e('s_and_b32 s24, s23, 7')
        e('s_lshr_b32 s25, s23, 3\ns_mul_i32 s25, s25, 6\ns_add_u32 s25, s25, s22')
        e('s_lshl_b32 s26, s24, 2')
        e('s_mul_i32 s27, s24, 36\ns_add_u32 s27, s27, s25')
        e(f's_mul_i32 s28, s27, {18*1024}\ns_add_u32 s28, s28, {OFF_W1P}')
        e('s_waitcnt lgkmcnt(0)')
        srd_ws(e, WS, 4, WS_END)
        srd_ws(e, B1S, 20, F*2)
        for q in range(18):
            e.vm(f'buffer_load_dwordx4 v[{16+4*q}:{19+4*q}], v5, s[{WS}:{WS+3}], s28 offen offset:{(q % 4)*1024}', ('W', q))
            if q % 4 == 3: e('s_add_u32 s28, s28, 4096')
        e('s_lshl_b32 s29, s27, 5\nv_lshlrev_b32 v6, 1, v3')
        e.vm(f'buffer_load_ushort v7, v6, s[{B1S}:{B1S+3}], s29 offen', 'b1')
        e('s_mov_b32 s30, 0x3f803f80')
        for k in range(4): e(f'v_mov_b32 v{96+k}, 0')
        for q in range(18):
            e.wait_vm(('W', q))
            for k in range(4): e(f'v_dot2_f32_bf16 v{96+k}, v{16+4*q+k}, s30, v{96+k}')
        e('v_add_f32 v96, v96, v97\nv_add_f32 v98, v98, v99\nv_add_f32 v96, v96, v98')
        e('v_mov_b32 v97, v96\ns_nop 1\nv_permlane32_swap_b32 v96, v97\nv_add_f32 v96, v96, v97')
        e('v_mov_b32 v97, v96\ns_nop 1\nv_permlane16_swap_b32 v96, v97\nv_add_f32 v96, v96, v97')
        e.wait_vm('b1')
        e('v_lshlrev_b32 v7, 16, v7')
        e('v_lshrrev_b32 v8, 2, v3\nv_lshlrev_b32 v8, 5, v8\nv_and_b32 v9, 3, v3\nv_lshl_add_u32 v8, v9, 2, v8')
        e(f's_lshl_b32 s31, s27, 7\ns_add_u32 s31, s31, {OFF_BC}')
        e('v_cmp_gt_u32 vcc, 16, v1\ns_and_saveexec_b64 s[32:33], vcc')
        e.vm(f'buffer_store_dword v7, v8, s[{WS}:{WS+3}], s31 offen')
        e.vm(f'buffer_store_dword v96, v8, s[{WS}:{WS+3}], s31 offen offset:16')
    e.label(f'{name}_end')
    e('s_endpgm')
    return kernel_header(name) + e.text(verbose=True) + kernel_desc(name, 256)

if __name__ == '__main__':
    t = gen_k3()
    open('k3.s', 'w').write('; @launch kernel=k3_kernel grid=(240,1,1) block=(384,1,1) lds=74240\n.amdgcn_target "amdgcn-amd-amdhsa--gfx950"\n' + t)
```

```python
from asmlib import *
from layout import *

def srd_ws(e, sreg, sptr, size):
    e(f's_mov_b32 s{sreg}, s{sptr}')
    e(f's_and_b32 s{sreg+1}, s{sptr+1}, 0xffff')
    e(f's_mov_b32 s{sreg+2}, {size}')
    e(f's_mov_b32 s{sreg+3}, 0x20000')

K2C = -2.0*0.7978845608028654*1.4426950408889634
K1C = K2C*0.044715

def gen_k4(name='k4_kernel', rate=(2,1), LA=8, stamp=False, awg=1, bwg=1, rate2=None):
    e = Emit()
    nst = [0]
    def STAMP():
        if stamp:
            k = nst[0]; nst[0] += 1
            e(f's_memtime s[{52+2*k}:{53+2*k}]'); e.wait_all_ds()
    WS = 8
    vL16 = 1; vTmp = 2; vHB0 = 3; vHB1 = 4; vG0 = 5; vG1 = 6; vGR0 = 7; vGR1 = 8; vK1 = 9; vBCo = 10
    RINV = 12; C0 = 16
    RING = 20
    BX = 92
    HACC = 124
    BCB = 204
    Z = 220; T = 224
    PK = 228
    ST = 232
    def ring(n): b = RING + 4*(n % 18); return f'v[{b}:{b+3}]'
    def bc(q, mt):
        if q < 16: b = (q*4+mt)*4; return f'a[{b}:{b+3}]'
        b = BX + ((q-16)*4+mt)*4; return f'v[{b}:{b+3}]'
    def gb(q2, mt): b = BX + ((q2 & 1)*4+mt)*4; return f'v[{b}:{b+3}]'
    def hacc(p, mt): return HACC + (p % 5)*16 + mt*4
    def oacc(dt, mt): return (dt*4+mt)*4
    LDS_G = 73728
    e('s_cmp_ge_u32 s2, 256')
    e(f's_cbranch_scc1 {name}_end')
    e('s_load_dwordx2 s[4:5], s[0:1], 80')
    if stamp: e('s_memtime s[40:41]')
    e('v_lshrrev_b32 v2, 6, v0')
    e('v_and_b32 v11, 63, v0')
    e('v_readfirstlane_b32 s12, v2')
    e(f'v_lshlrev_b32 v{vL16}, 4, v11')
    e('s_lshr_b32 s13, s2, 3')
    e('s_and_b32 s14, s2, 7')
    e(f's_mul_i32 s15, s13, 73728')
    e(f's_mul_i32 s16, s12, 18432')
    e(f's_add_u32 s17, s15, s16')
    e(f's_add_u32 s17, s17, {OFF_H}')
    e(f's_mov_b32 s18, s16')
    e('s_lshl_b32 s19, s14, 2\ns_add_u32 s19, s19, s12')
    e(f's_mul_i32 s20, s19, {162*1024}')
    e(f's_add_u32 s21, s20, {OFF_W1P}')
    e(f's_add_u32 s22, s20, {OFF_W2P}')
    e(f's_mul_i32 s23, s19, {9*128}\ns_add_u32 s23, s23, {OFF_BC}')
    e(f'v_lshrrev_b32 v{vBCo}, 4, v11\nv_lshlrev_b32 v{vBCo}, 5, v{vBCo}')
    e(f's_mul_i32 s24, s13, {6*512}\ns_add_u32 s24, s24, {OFF_ST}')
    e(f'v_lshlrev_b32 v{vTmp}, 3, v11')
    e(f's_mul_i32 s25, s14, 2359296\ns_add_u32 s25, s25, s15\ns_add_u32 s25, s25, s16\ns_add_u32 s25, s25, {OFF_P}')
    e(f'v_mov_b32 v{vHB0}, v{vL16}\nv_add_u32 v{vHB1}, 36864, v{vL16}')
    e('s_lshr_b32 s26, s12, 1\ns_lshl_b32 s26, s26, 12\ns_and_b32 s27, s12, 1\ns_lshl_b32 s27, s27, 3\ns_add_u32 s26, s26, s27')
    e(f's_add_u32 s26, s26, {LDS_G}')
    e(f'v_add_u32 v{vG0}, s26, v{vL16}\nv_add_u32 v{vG1}, 32768, v{vG0}')
    e(f'v_add_u32 v{vGR0}, {LDS_G}, v{vL16}\nv_add_u32 v{vGR1}, 36864, v{vGR0}')
    e(f'v_mov_b32 v{vK1}, {lit(K1C)}')
    e('s_waitcnt lgkmcnt(0)')
    srd_ws(e, WS, 4, WS_END)
    def aload(n):
        if n < 162: sreg, k = 21, n
        else: sreg, k = 22, n-162
        e.vm(f'buffer_load_dwordx4 {ring(n)}, v{vL16}, s[{WS}:{WS+3}], s{sreg} offen offset:{(k % 4)*1024}', ('A', n))
        if k % 4 == 3: e(f's_add_u32 s{sreg}, s{sreg}, 4096')
    for q in range(18):
        if q % 4 == 0:
            e(f's_add_u32 m0, s18, {q*1024}')
            if q: e(f's_add_u32 s17, s17, 4096')
            else: e('s_nop 0')
        e.vm(f'buffer_load_dwordx4 v{vL16}, s[{WS}:{WS+3}], s17 offen offset:{(q % 4)*1024} lds', ('H', q))
        aload(q)
    for cb in range(6):
        e.vm(f'buffer_load_dwordx2 v[{ST+2*cb}:{ST+2*cb+1}], v{vTmp}, s[{WS}:{WS+3}], s24 offen offset:{cb*512}', ('ST', cb))
    def bcload(p):
        b = BCB + (p & 1)*8
        e.vm(f'buffer_load_dwordx4 v[{b}:{b+3}], v{vBCo}, s[{WS}:{WS+3}], s23 offen offset:{p*128}', ('BC', p, 0))
        e.vm(f'buffer_load_dwordx4 v[{b+4}:{b+7}], v{vBCo}, s[{WS}:{WS+3}], s23 offen offset:{p*128+16}', ('BC', p))
    bcload(0); bcload(1)

    fq = []
    def F(min_slot, s): fq.append((min_slot, s))
    st = []
    def S(s): F(8, s)
    F(8, lambda: e.wait_vm(('ST', 5)))
    for cb in range(1, 6):
        S(f'v_add_f32 v{ST}, v{ST}, v{ST+2*cb}'); S(f'v_add_f32 v{ST+1}, v{ST+1}, v{ST+2*cb+1}')
    S(f'v_mul_f32 v{ST}, {lit(1.0/576)}, v{ST}')
    S(f'v_mul_f32 v{ST+1}, {lit(1.0/576)}, v{ST+1}')
    S(f'v_fma_f32 v{ST+1}, -v{ST}, v{ST}, v{ST+1}')
    S(f'v_max_f32 v{ST+1}, 0, v{ST+1}')
    S(f'v_cvt_pk_bf16_f32 v{ST+2}, v{ST}, v{ST+1}')
    S(f'v_lshlrev_b32 v{ST+3}, 16, v{ST+2}')
    S(f'v_and_b32 v{ST+4}, 0xffff0000, v{ST+2}')
    S(f'v_add_f32 v{ST+4}, {lit(1e-5)}, v{ST+4}')
    S(f'v_cvt_pk_bf16_f32 v{ST+4}, v{ST+4}, v{ST+4}')
    S(f'v_and_b32 v{ST+4}, 0xffff0000, v{ST+4}')
    S(f'v_sqrt_f32 v{ST+4}, v{ST+4}')
    S(f'v_cvt_pk_bf16_f32 v{ST+4}, v{ST+4}, v{ST+4}')
    S(f'v_and_b32 v{ST+4}, 0xffff0000, v{ST+4}')
    S(f'v_rcp_f32 v{ST+4}, v{ST+4}')
    S(f'v_mul_f32 v{ST+3}, v{ST+3}, v{ST+4}')
    S(f'v_sub_f32 v{ST+3}, 0, v{ST+3}')
    S(f'v_and_b32 v{ST+5}, 15, v0')
    S(f'v_lshlrev_b32 v{ST+5}, 2, v{ST+5}')
    for mt in range(4):
        S(f'v_add_u32 v{ST+6+mt}, {mt*64}, v{ST+5}')
    for mt in range(4):
        F(8, (lambda mt=mt: e.ds(f'ds_bpermute_b32 v{RINV+mt}, v{ST+6+mt}, v{ST+4}', ('RP', mt))))
        F(8, (lambda mt=mt: e.ds(f'ds_bpermute_b32 v{C0+mt}, v{ST+6+mt}, v{ST+3}', ('CP', mt))))
    gw_slot = {}
    gend = {}
    cur = {'slot': 0}
    def gelu_items(p):
        ms = 72*(p+1) + 1
        bcb = BCB + (p & 1)*8
        if p == 0: F(ms, lambda: e.wait_ds(('CP', 3)))
        F(ms, lambda p=p: e.wait_vm(('BC', p)))
        for mt in range(4):
            a = hacc(p, mt)
            for r in range(4): F(ms, f'v_fma_f32 v{T+r}, v{C0+mt}, v{bcb+4+r}, v{bcb+r}')
            for r in range(4): F(ms, f'v_fma_f32 v{Z+r}, v{a+r}, v{RINV+mt}, v{T+r}')
            for r in range(4): F(ms, f'v_mul_f32 v{T+r}, v{Z+r}, v{Z+r}')
            for r in range(4): F(ms, f'v_fmaak_f32 v{T+r}, v{T+r}, v{vK1}, {lit(K2C)}')
            for r in range(4): F(ms, f'v_mul_f32 v{T+r}, v{Z+r}, v{T+r}')
            for r in range(4): F(ms, f'v_exp_f32 v{T+r}, v{T+r}')
            for r in range(4): F(ms, f'v_add_f32 v{T+r}, 1.0, v{T+r}')
            for r in range(4): F(ms, f'v_rcp_f32 v{T+r}, v{T+r}')
            for r in range(4): F(ms, f'v_mul_f32 v{Z+r}, v{Z+r}, v{T+r}')
            pk = PK + (mt & 1)*2
            F(ms, f'v_cvt_pk_bf16_f32 v{pk}, v{Z}, v{Z+1}')
            F(ms, f'v_cvt_pk_bf16_f32 v{pk+1}, v{Z+2}, v{Z+3}')
            base = vG0 if p < 4 else vG1
            off = (p % 4)*8192 + mt*1024 if p < 8 else 32768 + mt*1024
            if p == 8: base, off = vG1, 32768 + mt*1024
            def wr(base=base, off=off, pk=pk, p=p, mt=mt):
                e.ds(f'ds_write_b64 v{base}, v[{pk}:{pk+1}] offset:{off}', ('GW', p, mt))
                if mt == 3: gw_slot[p] = cur['slot']
            F(ms, wr)
        if p + 2 < 9: F(ms, lambda p=p: bcload(p+2))
        def done(p=p): gend[p] = cur['slot']
        F(ms, done)
    for p in range(9): gelu_items(p)

    def drain(n, slot):
        k = 0
        while fq and k < n and fq[0][0] <= slot:
            _, it = fq.pop(0)
            if callable(it):
                before = len(e.L); it()
                if len(e.L) > before: k += 1
            else:
                e(it); k += 1
    last_barrier = {'slot': -1}
    def barrier(slot):
        e.wait_all_ds(); e('s_barrier'); last_barrier['slot'] = slot

    def bread(q, mt):
        idx = mt*18 + q
        base, off = (vHB0, idx*1024) if idx < 36 else (vHB1, (idx-36)*1024)
        e.ds(f'ds_read_b128 {bc(q, mt)}, v{base} offset:{off}', ('B', q, mt))
    def gread(q2, mt):
        idx = q2*4 + mt
        base, off = (vGR0, idx*1024) if idx < 36 else (vGR1, (idx-36)*1024)
        e.ds(f'ds_read_b128 {gb(q2, mt)}, v{base} offset:{off}', ('G', q2, mt))
    STAMP()
    e.wait_vm(('H', 5)); e('s_barrier')
    STAMP()
    nb = 0
    for t in range(LA):
        bread(t//4, t % 4)
    nb = LA
    slot = 0
    for p in range(9):
        if p == 1: STAMP()
        for q in range(18):
            n = p*18 + q
            for mt in range(4):
                cur['slot'] = slot
                if mt == 0 and n % awg == 0: e.wait_vm(('A', min(n + awg - 1, 323)))
                if p == 0 and (mt % bwg == 0): e.wait_ds(('B', q, mt + bwg - 1))
                a = hacc(p, mt)
                c = '0' if q == 0 else f'v[{a}:{a+3}]'
                if q == 0 and p >= 5:
                    assert gend.get(p-5, 10**9) <= slot, (p, gend, slot)
                e(f'v_mfma_f32_16x16x32_bf16 v[{a}:{a+3}], {ring(n)}, {bc(q, mt)}, {c}')
                if mt == 3 and n + 18 < 324: aload(n + 18)
                if p == 0 and nb < 72:
                    qq = nb//4
                    if nb % 4 == 0 and qq in (6, 12):
                        e.wait_vm(('H', qq+5)); e('s_barrier')
                    bread(qq, nb % 4); nb += 1
                if p == 8 and q == 17 and mt == 0:
                    pass
                quota = rate[slot % len(rate)]
                drain(quota, slot)
                slot += 1
                if p == 8 and q == 16 and mt == 3:
                    cur['slot'] = slot
                    assert gw_slot.get(0, 10**9) < slot
                    barrier(slot)
                    for m2 in range(4): gread(0, m2)
    STAMP()
    for q2 in range(18):
        for dt in range(9):
            n = 162 + q2*9 + dt
            for mt in range(4):
                cur['slot'] = slot
                if mt == 0 and n % awg == 0: e.wait_vm(('A', min(n + awg - 1, 323)))
                if dt == 0 and mt == 0: e.wait_ds(('G', q2, 3))
                a = oacc(dt, mt)
                c = '0' if q2 == 0 else f'a[{a}:{a+3}]'
                e(f'v_mfma_f32_16x16x32_bf16 a[{a}:{a+3}], {ring(n)}, {gb(q2, mt)}, {c}')
                if mt == 3 and n + 18 < 324: aload(n + 18)
                if q2 + 1 < 18 and mt == 1 and 1 <= dt <= 4:
                    if dt == 1:
                        pn = (q2+1) >> 1
                        assert pn in gw_slot and gw_slot[pn] < slot, (q2, pn, gw_slot, slot)
                        if last_barrier['slot'] <= gw_slot[pn]: barrier(slot)
                    gread(q2+1, dt-1)
                r2 = rate2 or rate
                quota = r2[slot % len(r2)]
                drain(quota, slot)
                slot += 1
                if q2 == 17 and mt == 3:
                    pass
    assert not fq or all(False for _ in fq), f'fillers left: {len(fq)}'
    STAMP()
    for dt in range(9):
        for a2 in range(2):
            tb = Z if a2 == 0 else HACC
            tb = HACC + (dt*2 + a2) % 8 * 8
            for t in range(2):
                acc = oacc(dt, 2*a2 + t)
                for r in range(4): e(f'v_accvgpr_read_b32 v{tb+4*t+r}, a{acc+r}')
            pk = RING + ((dt*2+a2) % 16)*4
            e(f'v_cvt_pk_bf16_f32 v{pk}, v{tb}, v{tb+1}')
            e(f'v_cvt_pk_bf16_f32 v{pk+1}, v{tb+2}, v{tb+3}')
            e(f'v_cvt_pk_bf16_f32 v{pk+2}, v{tb+4}, v{tb+5}')
            e(f'v_cvt_pk_bf16_f32 v{pk+3}, v{tb+6}, v{tb+7}')
            k = dt*2 + a2
            e.vm(f'buffer_store_dwordx4 v[{pk}:{pk+3}], v{vL16}, s[{WS}:{WS+3}], s25 offen offset:{(k % 4)*1024}')
            if k % 4 == 3: e('s_add_u32 s25, s25, 4096')
    if stamp:
        STAMP()
        e('s_waitcnt vmcnt(0)')
        STAMP()
        e('s_memtime s[42:43]\ns_waitcnt lgkmcnt(0)\ns_sub_u32 s42, s42, s40')
        e('s_load_dwordx2 s[44:45], s[0:1], 72\ns_waitcnt lgkmcnt(0)')
        e('s_mov_b32 s48, s44\ns_and_b32 s49, s45, 0xffff\ns_mov_b32 s50, 256\ns_mov_b32 s51, 0x20000')
        e('s_cmp_lg_u32 s2, 0\ns_cbranch_scc1 ' + name + '_end')
        e('v_mov_b32 v2, s42\nv_mov_b32 v3, 0\nbuffer_store_dword v2, v3, s[48:51], 0 offen')
        for k in range(nst[0]):
            e(f's_sub_u32 s42, s{52+2*k}, s40\nv_mov_b32 v2, s42\nbuffer_store_dword v2, v3, s[48:51], 0 offen offset:{4+4*k}')
    e.label(f'{name}_end')
    e('s_endpgm')
    return kernel_header(name) + e.text(verbose=True) + kernel_desc(name, 256, 256), gend

if __name__ == '__main__':
    import sys
    t, gend = gen_k4()
    print(gend)
    open('k4.s', 'w').write('; @launch kernel=k4_kernel grid=(256,1,1) block=(256,1,1) lds=147456\n.amdgcn_target "amdgcn-amd-amdhsa--gfx950"\n' + t)
```

```python
from asmlib import *
from layout import *
from k4 import srd_ws

def gen_k5(name='k5_kernel'):
    e = Emit()
    WS = 8; OUT = 12; B2 = 16
    e('s_cmp_ge_u32 s2, 288')
    e(f's_cbranch_scc1 {name}_end')
    e('s_load_dwordx2 s[4:5], s[0:1], 80')
    e('s_load_dwordx2 s[6:7], s[0:1], 64')
    e('s_load_dwordx2 s[20:21], s[0:1], 56')
    e('v_lshrrev_b32 v2, 6, v0')
    e('v_and_b32 v1, 63, v0')
    e('v_readfirstlane_b32 s22, v2')
    e('v_lshlrev_b32 v3, 4, v1')
    e('s_lshl_b32 s23, s2, 2\ns_add_u32 s23, s23, s22')
    e(f's_mul_hi_u32 s24, s23, {(2**32 + 35)//36}')
    e('s_mul_i32 s25, s24, 36\ns_sub_u32 s25, s23, s25')
    e('s_cmp_ge_u32 s25, 18\ns_cselect_b32 s26, 1, 0')
    e('s_mul_i32 s27, s26, 18\ns_sub_u32 s27, s25, s27')
    e('s_mul_i32 s28, s24, 73728')
    for t in range(2):
        e(f's_lshl_b32 s29, s27, 1\ns_add_u32 s29, s29, {t}')
        e(f's_mul_hi_u32 s30, s29, {(2**32 + 8)//9}')
        e('s_mul_i32 s31, s30, 9\ns_sub_u32 s31, s29, s31')
        e('s_mul_i32 s30, s30, 18432\ns_lshl_b32 s31, s31, 1\ns_add_u32 s31, s31, s26\ns_lshl_b32 s31, s31, 10')
        e(f's_add_u32 s{32+t}, s30, s31\ns_add_u32 s{32+t}, s{32+t}, s28\ns_add_u32 s{32+t}, s{32+t}, {OFF_P}')
    e(f's_mul_i32 s30, s26, {2*18*1024}\ns_lshl_b32 s31, s27, 10\ns_add_u32 s34, s30, s31\ns_add_u32 s34, s34, s28\ns_add_u32 s34, s34, {OFF_H}')
    e(f's_add_u32 s35, s34, {18*1024}')
    e('v_lshrrev_b32 v4, 4, v1')
    e('v_lshlrev_b32 v5, 3, v4')
    e('s_lshl_b32 s36, s27, 6')
    e('s_waitcnt lgkmcnt(0)')
    srd_ws(e, WS, 4, WS_END)
    srd_ws(e, OUT, 6, S*D*2)
    srd_ws(e, B2, 20, D*2)
    PB = 16
    for j in range(8):
        for t in range(2):
            b = PB + (j*2+t)*4
            e.vm(f'buffer_load_dwordx4 v[{b}:{b+3}], v3, s[{WS}:{WS+3}], s{32+t} offen', ('P', j, t))
        if j < 7: e('s_add_u32 s32, s32, 2359296\ns_add_u32 s33, s33, 2359296')
    HB = 80
    e.vm(f'buffer_load_dwordx4 v[{HB}:{HB+3}], v3, s[{WS}:{WS+3}], s34 offen', 'H0')
    e.vm(f'buffer_load_dwordx4 v[{HB+4}:{HB+7}], v3, s[{WS}:{WS+3}], s35 offen', 'H1')
    BB = 88
    e.vm(f'buffer_load_dwordx2 v[{BB}:{BB+1}], v5, s[{B2}:{B2+3}], s36 offen', 'B0')
    e.vm(f'buffer_load_dwordx2 v[{BB+2}:{BB+3}], v5, s[{B2}:{B2+3}], s36 offen offset:32', 'B1')
    e('v_and_b32 v6, 15, v1')
    e('v_mul_u32_u24 v6, 73728, v6')
    e('v_and_b32 v7, 1, v4\nv_lshlrev_b32 v7, 5, v7\nv_lshrrev_b32 v8, 1, v4\nv_lshlrev_b32 v8, 4, v8\nv_add3_u32 v6, v6, v7, v8')
    e('s_lshl_b32 s37, s24, 1\ns_add_u32 s37, s37, s26\ns_mul_i32 s37, s37, 1152\ns_add_u32 s37, s37, s36')
    e(f's_add_u32 s38, s37, {16*64*1152}')
    e('s_mov_b32 s40, 0x00003f80\ns_mov_b32 s41, 0x3f800000')
    AC = 96
    for j in range(8):
        e.wait_vm(('P', j, 1))
        for t in range(2):
            b = PB + (j*2+t)*4
            for k in range(4):
                a0 = AC + t*8 + (k >> 1)*4 + (k & 1)*2
                c0 = '0' if j == 0 else f'v{a0}'; c1 = '0' if j == 0 else f'v{a0+1}'
                e(f'v_dot2_f32_bf16 v{a0}, v{b+k}, s40, {c0}')
                e(f'v_dot2_f32_bf16 v{a0+1}, v{b+k}, s41, {c1}')
    e.wait_vm('B1')
    TM = 16
    OB = 112
    for m in range(2):
        for t in range(2):
            for k in range(2):
                a0 = AC + t*8 + m*4 + 2*k
                e(f'v_cvt_pk_bf16_f32 v{TM}, v{a0}, v{a0+1}')
                e(f'v_lshlrev_b32 v{TM+1}, 16, v{TM}\nv_and_b32 v{TM+2}, 0xffff0000, v{TM}')
                bb = BB + 2*t + k
                e(f'v_lshlrev_b32 v{TM+3}, 16, v{bb}\nv_and_b32 v{TM+4}, 0xffff0000, v{bb}')
                e(f'v_add_f32 v{TM+1}, v{TM+1}, v{TM+3}\nv_add_f32 v{TM+2}, v{TM+2}, v{TM+4}')
                e(f'v_cvt_pk_bf16_f32 v{TM}, v{TM+1}, v{TM+2}')
                e(f'v_lshlrev_b32 v{TM+1}, 16, v{TM}\nv_and_b32 v{TM+2}, 0xffff0000, v{TM}')
                hb = HB + 4*m + 2*t + k
                e(f'v_lshlrev_b32 v{TM+3}, 16, v{hb}\nv_and_b32 v{TM+4}, 0xffff0000, v{hb}')
                e(f'v_add_f32 v{TM+1}, v{TM+1}, v{TM+3}\nv_add_f32 v{TM+2}, v{TM+2}, v{TM+4}')
                e(f'v_cvt_pk_bf16_f32 v{OB+4*m+2*t+k}, v{TM+1}, v{TM+2}')
        o = OB + 4*m
        e(f'v_permlane16_swap_b32 v{o}, v{o+2}')
        e(f'v_permlane16_swap_b32 v{o+1}, v{o+3}')
        e.vm(f'buffer_store_dwordx4 v[{o}:{o+3}], v6, s[{OUT}:{OUT+3}], s{37+m} offen')
    e.label(f'{name}_end')
    e('s_endpgm')
    return kernel_header(name) + e.text(verbose=True) + kernel_desc(name, 128)

if __name__ == '__main__':
    t = gen_k5()
    open('k5.s', 'w').write('; @launch kernel=k5_kernel grid=(288,1,1) block=(256,1,1) lds=0\n.amdgcn_target "amdgcn-amd-amdhsa--gfx950"\n' + t)
```

```python
import numpy as np
S, D, F = 2048, 576, 4608
OFF_T   = 0x0
OFF_V   = 0x240000
OFF_H   = 0x480000
OFF_WT  = 0x6C0000
OFF_QT  = 0x900000
OFF_ST  = 0x910000
OFF_BC  = 0x930000
OFF_W1P = 0x940000
OFF_W2P = 0xE50000
OFF_P   = 0x1360000
WS_END  = 0x2560000

def row_of(b, mt, n):
    si, nt = mt >> 1, mt & 1
    return 64*(16*nt + n) + 2*b + si

def slots_d(q, g):
    return [32*q + 4*g + s for s in range(4)] + [32*q + 16 + 4*g + s for s in range(4)]

def pack_H(h):
    H = np.zeros((32, 4, 18, 64, 8), h.dtype)
    for b in range(32):
        for mt in range(4):
            for l in range(64):
                n, g = l & 15, l >> 4
                r = row_of(b, mt, n)
                for q in range(18):
                    H[b, mt, q, l] = h[r, slots_d(q, g)]
    return H
def unpack_H(H):
    h = np.zeros((S, D), H.dtype)
    for b in range(32):
        for mt in range(4):
            for l in range(64):
                n, g = l & 15, l >> 4
                r = row_of(b, mt, n)
                for q in range(18):
                    h[r, slots_d(q, g)] = H[b, mt, q, l]
    return h

def pack_W1(w1):
    out = np.zeros((8, 4, 9, 18, 64, 8), w1.dtype)
    l = np.arange(64); i = l & 15; g = l >> 4
    for j in range(8):
        for w in range(4):
            for p in range(9):
                f = 576*j + 144*w + 16*p + i
                for q in range(18):
                    for s in range(8):
                        d = 32*q + (4*g + s if s < 4 else 16 + 4*g + s - 4)
                        out[j, w, p, q, :, s] = w1[d, f]
    return out
def ftile_base(u): return 144*(u & 3) + 16*(u >> 2)
def pack_W2(w2):
    out = np.zeros((8, 4, 18, 9, 64, 8), w2.dtype)
    l = np.arange(64); i = l & 15; g = l >> 4
    for j in range(8):
        for w in range(4):
            for q2 in range(18):
                for dt in range(9):
                    dcol = 16*(9*w + dt) + i
                    for s in range(8):
                        u = 2*q2 + (s >> 2)
                        f = 576*j + ftile_base(u) + 4*g + (s & 3)
                        out[j, w, q2, dt, :, s] = w2[f, dcol]
    return out
def pack_BC(b1, cs):
    out = np.zeros((8, 4, 9, 4, 8), np.float32)
    for j in range(8):
        for w in range(4):
            for p in range(9):
                for g in range(4):
                    f = 576*j + 144*w + 16*p + 4*g + np.arange(4)
                    out[j, w, p, g, :4] = b1[f]; out[j, w, p, g, 4:] = cs[f]
    return out
def pack_ST(h):
    out = np.zeros((32, 6, 64, 2), np.float32)
    for b in range(32):
        for mt in range(4):
            for n in range(16):
                r = row_of(b, mt, n)
                seg = h[r].astype(np.float32).reshape(6, 96)
                out[b, :, mt*16+n, 0] = seg.sum(1); out[b, :, mt*16+n, 1] = (seg*seg).sum(1)
    return out
def unpack_P(P):
    out = np.zeros((8, S, D), P.dtype)
    l = np.arange(64); n = l & 15; g = l >> 4
    for b in range(32):
        for w in range(4):
            for dt in range(9):
                for a in range(2):
                    for t in range(2):
                        mt = 2*a + t
                        rows = row_of(b, mt, n)
                        for r in range(4):
                            d = 16*(9*w + dt) + 4*g + r
                            out[:, rows, d] = P[:, b, w, dt, a, :, 4*t + r]
    return out
```

```python
import k1, k2, k3, k4, k5
NAME = 'sequential_preLN__spectral_gfnet__dense_activation_gelu__prompt'
def build(k4kw=None, extra_launch=''):
    ref = open('cdna_kernels/' + NAME + '.s.ref').read().split('\n')
    hdr = [l for l in ref if l.startswith(';') and '@launch' not in l and 'Override launch' not in l and 'grid=ceil' not in l]
    top = []
    for l in ref:
        if l.startswith('; Override'): break
        top.append(l)
    launches = [
        '; @launch kernel=k1_kernel grid=(256,1,1) block=(384,1,1) lds=74240',
        '; @launch kernel=k2_kernel grid=(216,1,1) block=(256,1,1) lds=73728',
        '; @launch kernel=k3_kernel grid=(240,1,1) block=(384,1,1) lds=74240',
        '; @launch kernel=k4_kernel grid=(256,1,1) block=(256,1,1) lds=147456',
        '; @launch kernel=k5_kernel grid=(288,1,1) block=(256,1,1) lds=0',
    ]
    t4, gend = k4.gen_k4(**(k4kw or {}))
    body = k1.gen_k1_full() + k2.gen_k2() + k3.gen_k3() + t4 + k5.gen_k5()
    return '\n'.join(top) + '\n' + '\n'.join(launches) + extra_launch + '\n.amdgcn_target "amdgcn-amd-amdhsa--gfx950"\n' + body
if __name__ == '__main__':
    t = build(dict(awg=3, bwg=4, LA=12))
    open('full.s', 'w').write(t)
    open('cdna_kernels/' + NAME + '.s', 'w').write(t)
    print(len(t))
```

```python
import re

TRANS = ('v_exp_f32', 'v_log_f32', 'v_rcp_f32', 'v_rsq_f32', 'v_sqrt_f32', 'v_sin_f32', 'v_cos_f32')

def parse_regs(tok):
    t = tok.strip()
    t = t.replace('abs(', '').replace(')', '').replace('|', '')
    if t.startswith('-'): t = t[1:]
    if t in ('vcc', 'vcc_lo', 'vcc_hi'): return [('x', 'vcc')]
    if t in ('exec', 'exec_lo', 'exec_hi'): return [('x', 'exec')]
    if t == 'm0': return [('x', 'm0')]
    m = re.fullmatch(r'([vas])(\d+)', t)
    if m: return [(m.group(1), int(m.group(2)))]
    m = re.fullmatch(r'([vas])\[(\d+):(\d+)\]', t)
    if m: return [(m.group(1), i) for i in range(int(m.group(2)), int(m.group(3)) + 1)]
    return []

def split_ops(s):
    out = []; depth = 0; cur = ''
    for ch in s:
        if ch == '[': depth += 1
        if ch == ']': depth -= 1
        if ch == ',' and depth == 0:
            out.append(cur); cur = ''
        else: cur += ch
    if cur.strip(): out.append(cur)
    return [o.strip() for o in out]

class Ins:
    __slots__ = ('text', 'op', 'kind', 'defs', 'uses', 'passes', 'srcc', 'dpp', 'sdwa', 'states', 'storedata', 'ldsdma', 'ab')
    def __init__(self, text):
        self.text = text
        t = text.split(';')[0].strip()
        parts = t.split(None, 1)
        self.op = parts[0] if parts else ''
        rest = parts[1] if len(parts) > 1 else ''
        self.defs = []; self.uses = []; self.passes = 0; self.srcc = []; self.ab = []
        self.dpp = False; self.sdwa = False; self.states = 1; self.storedata = []; self.ldsdma = False
        op = self.op
        if op.endswith(':') or op.startswith('.') or op == '':
            self.kind = 'label' if op.endswith(':') else 'dir'; self.states = 0; return
        ops = split_ops(rest)
        mods = ''
        if ops:
            last = ops[-1].split(None, 1)
            m = re.match(r'^(\S+\[[^\]]*\]|\S+)\s*(.*)$', ops[-1])
            ops[-1] = m.group(1); mods = m.group(2)
        R = [parse_regs(o) for o in ops]
        base = re.sub(r'_(e32|e64|dpp|sdwa)$', '', op)
        if op.startswith('v_mfma'):
            self.kind = 'mfma'
            self.passes = 8 if '32x32' in op else 4
            self.defs = R[0]; self.ab = R[1] + R[2]; self.srcc = R[3]; self.uses = R[1] + R[2] + R[3]
        elif op.startswith('v_'):
            self.kind = 'trans' if base in TRANS else 'valu'
            self.dpp = ('_dpp' in op) or ('quad_perm' in mods) or ('row_' in mods)
            self.sdwa = '_sdwa' in op or 'op_sel' in mods and not op.startswith('v_pk')
            if base.startswith('v_cmp'):
                self.defs = R[0]; self.uses = sum(R[1:], [])
                if base.startswith('v_cmpx'): self.defs = self.defs + [('x', 'exec')]
            elif base in ('v_readfirstlane_b32', 'v_readlane_b32'):
                self.kind = 'rdlane'; self.defs = R[0]; self.uses = sum(R[1:], [])
            elif 'permlane' in base and 'swap' in base:
                self.kind = 'perm'; self.defs = R[0] + R[1]; self.uses = R[0] + R[1]
            elif base in ('v_add_co_u32', 'v_sub_co_u32', 'v_addc_co_u32', 'v_subb_co_u32', 'v_mad_u64_u32'):
                self.defs = R[0] + R[1]; self.uses = sum(R[2:], [])
            else:
                self.defs = R[0]; self.uses = sum(R[1:], [])
                if base in ('v_fmac_f32', 'v_dot2c_f32_bf16', 'v_pk_fmac_f16', 'v_mac_f32') or self.dpp or 'UNUSED_PRESERVE' in mods or base == 'v_writelane_b32':
                    self.uses = self.uses + R[0]
                if base == 'v_cndmask_b32' and len(ops) == 3: self.uses = self.uses + [('x', 'vcc')]
        elif op.startswith('buffer_') or op.startswith('global_'):
            self.kind = 'vmem'
            lds = re.search(r'\blds\b', mods) is not None or 'load_lds' in op
            self.ldsdma = lds
            if 'load' in op and not lds:
                self.defs = R[0]; self.uses = sum(R[1:], [])
                if 'd16' in op: self.uses = self.uses + R[0]
            elif lds:
                self.uses = sum(R, []) + [('x', 'm0')]
            else:
                self.uses = sum(R, [])
                if op.startswith('buffer_'): data = R[0]
                else: data = R[1]
                if 'x4' in op or 'x3' in op: self.storedata = data
                if 'atomic' in op and 'sc0' in mods: self.defs = data
        elif op.startswith('ds_'):
            self.kind = 'ds'
            if op.startswith('ds_read') or op.startswith('ds_bpermute') or op.startswith('ds_permute') or op.startswith('ds_swizzle'):
                self.defs = R[0]; self.uses = sum(R[1:], [])
                if 'd16' in op: self.uses = self.uses + R[0]
            else:
                self.uses = sum(R, [])
        elif op == 's_nop':
            self.kind = 'salu'; self.states = int(rest.strip(), 0) + 1
        elif op.startswith('s_'):
            self.kind = 'salu'
            if op.startswith('s_cmp') or op.startswith('s_cbranch') or op.startswith('s_branch') or op in ('s_waitcnt', 's_barrier', 's_endpgm', 's_setprio', 's_sleep') or op.startswith('s_bitcmp'):
                self.uses = sum(R, [])
            else:
                self.defs = R[0] if R else []; self.uses = sum(R[1:], [])
                if 'saveexec' in op: self.defs = self.defs + [('x', 'exec')]
        else:
            raise ValueError('unknown instruction: ' + text)

def need_states(prod, cons):
    n = 0
    pd = set(prod.defs)
    pk, ck = prod.kind, cons.kind
    valu_like = ('valu', 'trans', 'rdlane', 'perm')
    vd = set(r for r in pd if r[0] in 'va')
    sd = set(r for r in pd if r[0] == 's' or r == ('x', 'vcc'))
    cu = set(cons.uses); cdf = set(cons.defs)
    if pk in valu_like:
        if ck == 'mfma' and vd & cu: n = max(n, 2)
        if ck in valu_like and cons.dpp and vd & cu: n = max(n, 2)
        if ck == 'perm' and vd & cu: n = max(n, 2)
        if ck == 'rdlane' and vd & cu: n = max(n, 1)
        if pk == 'trans' and ck in valu_like and vd & cu: n = max(n, 1)
        if prod.sdwa and ck in valu_like and vd & (cu | cdf): n = max(n, 1)
        if sd:
            if ck == 'vmem' and sd & cu: n = max(n, 5)
            if ck in valu_like and sd & cu: n = max(n, 2)
            if ck == 'rdlane' and sd & cu: n = max(n, 4)
            if ck == 'mfma' and sd & cu: n = max(n, 2)
        if ('x', 'exec') in pd:
            if ck == 'mfma': n = max(n, 4)
            if ck in valu_like and cons.dpp: n = max(n, 5)
            if ck in ('rdlane', 'perm'): n = max(n, 4)
            if ck in valu_like: n = max(n, 2)
    if prod.op.startswith('v_dot'):
        if vd & (cu | cdf):
            same = cons.op == prod.op
            if same:
                ops = [r for r in cons.uses]
                last = split_ops(cons.text.split(None, 1)[1])[-1].split()[0]
                srcc = set(parse_regs(last))
                ab = set(cons.uses) - srcc
                if vd & ab: n = max(n, 3)
            else:
                n = max(n, 3)
    if pk == 'mfma':
        p = prod.passes
        full = {2: 5, 4: 8, 8: 12}[p]
        if ck in valu_like or ck in ('vmem', 'ds'):
            if vd & (cu | cdf): n = max(n, full)
            if ck in valu_like and set(prod.srcc) & cdf: n = max(n, {2: 1, 4: 3, 8: 7}[p])
        if ck == 'mfma':
            if vd & set(cons.ab): n = max(n, full)
            if vd & set(cons.srcc):
                if not (prod.defs == cons.srcc and prod.passes == cons.passes): n = max(n, {2: 4, 4: 6, 8: 10}[p])
                elif p == 2: n = max(n, 2)
    if pk == 'salu' and ('x', 'm0') in pd and ck == 'vmem' and cons.ldsdma: n = max(n, 1)
    if pk == 'vmem' and prod.storedata:
        if set(prod.storedata) & cdf:
            n = max(n, 2 if ck in valu_like else 1)
    return n

def fix_hazards(lines, window=14, verbose=False):
    out = []; hist = []
    added = 0
    for ln in lines:
        s = ln.strip()
        if not s or s.startswith(';'):
            out.append(ln); continue
        ins = Ins(s)
        if ins.kind in ('label', 'dir'):
            out.append(ln); continue
        need = 0; dist = 0
        for h in reversed(hist):
            if dist >= window: break
            r = need_states(h, ins)
            if r > dist: need = max(need, r - dist)
            dist += h.states
        while need > 0:
            k = min(need, 16)
            nop = f's_nop {k-1}'
            out.append(nop); hist.append(Ins(nop)); need -= k; added += k
        out.append(ln); hist.append(ins)
        if len(hist) > 40: hist = hist[-40:]
    if verbose: print('hazard nops added (states):', added)
    return out

PROF = False
OFF_DBG = 0x3000000
class Emit:
    def __init__(self):
        self.L = []
        self.vq = []
        self.lq = []
        self.nlabel = 0
    def __call__(self, s):
        for l in s.split('\n'):
            l = l.strip()
            if l: self.L.append(l)
    def vm(self, s, tag=None):
        self.L.append(s); self.vq.append(tag)
    def ds(self, s, tag=None):
        self.L.append(s); self.lq.append(tag)
    def _wait(self, q, tags, maxn):
        if not isinstance(tags, list): tags = [tags]
        idx = -1
        for i, t in enumerate(q):
            if t in tags: idx = i
        if idx < 0: return None
        n = len(q) - 1 - idx
        del q[:idx + 1]
        return n
    def wait_vm(self, tags):
        n = self._wait(self.vq, tags, 63)
        if n is None: return
        if n > 63: n = 63;
        self.L.append(f's_waitcnt vmcnt({n})')
        while len(self.vq) > n: self.vq.pop(0)
    def wait_ds(self, tags):
        n = self._wait(self.lq, tags, 15)
        if n is None: return
        if n > 15: n = 15
        self.L.append(f's_waitcnt lgkmcnt({n})')
        while len(self.lq) > n: self.lq.pop(0)
    def wait_all_vm(self):
        self.L.append('s_waitcnt vmcnt(0)'); self.vq = []
    def wait_all_ds(self):
        self.L.append('s_waitcnt lgkmcnt(0)'); self.lq = []
    def label(self, name): self.L.append(name + ':')
    def stamp(self, i):
        if PROF: self.L.append(f's_memrealtime s[{64+2*i}:{65+2*i}]')
    def prof_init(self, n=12):
        if PROF:
            for i in range(1, n): self.L.append(f's_mov_b64 s[{64+2*i}:{65+2*i}], 0')
            self.stamp(0)
    def prof_dump(self, kidx, name, n=12):
        if not PROF: return
        self.L.append('s_waitcnt vmcnt(0)')
        self.stamp(n-1)
        self.L.append('s_load_dwordx2 s[60:61], s[0:1], 80')
        self.L.append('s_waitcnt lgkmcnt(0)')
        self.L.append('s_mov_b64 exec, -1')
        self.L.append('v_lshrrev_b32 v1, 6, v0')
        self.L.append('s_nop 1')
        self.L.append('v_readfirstlane_b32 s62, v1')
        self.L.append('s_and_b32 s61, s61, 0xffff')
        self.L.append(f's_add_u32 s60, s60, {OFF_DBG + kidx*0x40000}')
        self.L.append('s_addc_u32 s61, s61, 0')
        self.L.append('s_mov_b32 s92, s60\ns_mov_b32 s93, s61\ns_mov_b32 s94, 0x40000\ns_mov_b32 s95, 0x20000'.replace('\\n', '\n'))
        self.L.append('s_lshl_b32 s63, s2, 3\ns_add_u32 s63, s63, s62\ns_lshl_b32 s63, s63, 6')
        self.L.append('v_mov_b32 v2, 0')
        for i in range(n):
            self.L.append(f'v_mov_b32 v1, s{64+2*i}')
            self.L.append(f'buffer_store_dword v1, v2, s[92:95], s63 offen offset:{4*i}')
    def text0(self): pass
    def text(self, fix=True, verbose=False):
        LL = []
        for l in self.L: LL += l.split('\n')
        L = fix_hazards(LL, verbose=verbose) if fix else LL
        return '\n'.join(L) + '\n'

def kernel_header(name):
    return f'.text\n.globl {name}\n.p2align 8\n.type {name},@function\n{name}:\n'

def kernel_desc(name, vgpr, agpr=0, sgpr=96):
    acc = (vgpr + 3)//4*4
    nfv = acc + agpr if agpr else vgpr
    return (f'.section .rodata,"a"\n.p2align 6\n.amdhsa_kernel {name}\n  .amdhsa_next_free_vgpr {nfv}\n  .amdhsa_next_free_sgpr {sgpr}\n'
            f'  .amdhsa_accum_offset {acc}\n  .amdhsa_group_segment_fixed_size 0\n  .amdhsa_kernarg_size 88\n  .amdhsa_user_sgpr_count 2\n'
            f'  .amdhsa_user_sgpr_kernarg_segment_ptr 1\n  .amdhsa_system_sgpr_workgroup_id_x 1\n  .amdhsa_float_denorm_mode_32 3\n.end_amdhsa_kernel\n')

def f2u(x):
    import struct
    return struct.unpack('<I', struct.pack('<f', x))[0]
def lit(x): return '0x%08x' % f2u(x)
```

```python
from asmlib import *
from layout import *
SC = 'sc1'
from k4 import srd_ws
from k3 import stats_tail

def gen_k1(name='k1_kernel', side=True):
    e = Emit()
    WS = 8; XS = 12; WRS = 16; WIS = 44
    NMAIN = 192; NSIDE = 64
    e(f's_cmp_ge_u32 s2, {NMAIN + (NSIDE if side else 0)}')
    e(f's_cbranch_scc1 {name}_exit')
    e.prof_init()
    e('s_load_dwordx2 s[4:5], s[0:1], 80')
    e('s_load_dwordx2 s[6:7], s[0:1], 0')
    e('s_load_dwordx2 s[20:21], s[0:1], 8')
    e('s_load_dwordx2 s[42:43], s[0:1], 16')
    e('v_lshrrev_b32 v2, 6, v0')
    e('v_and_b32 v1, 63, v0')
    e('v_readfirstlane_b32 s22, v2')
    e('v_and_b32 v3, 15, v1')
    e('v_lshrrev_b32 v4, 4, v1')
    e('v_lshlrev_b32 v5, 4, v1')
    if side:
        e(f's_cmp_ge_u32 s2, {NMAIN}')
        e(f's_cbranch_scc1 {name}_side')
    e('s_and_b32 s23, s2, 31')
    e('s_lshr_b32 s24, s2, 5')
    e('s_and_b32 s25, s22, 1')
    e('s_lshr_b32 s26, s22, 1')
    e('v_mul_u32_u24 v6, 73728, v3\nv_lshl_add_u32 v6, v4, 4, v6')
    e('s_mul_i32 s27, s23, 2304')
    e('s_mul_i32 s28, s22, 192\ns_add_u32 s27, s27, s28')
    e('s_mul_i32 s29, s22, 3072')
    e('s_waitcnt lgkmcnt(0)')
    e.stamp(9)
    srd_ws(e, WS, 4, WS_END)
    srd_ws(e, XS, 6, S*D*2)
    for c in range(3):
        for mt in range(4):
            si, p = mt >> 1, mt & 1
            e(f's_add_u32 s30, s27, {si*1152 + p*16*73728 + 64*c}')
            e(f's_add_u32 m0, s29, {(mt*18 + c)*1024}\ns_nop 0')
            e.vm(f'buffer_load_dwordx4 v6, s[{XS}:{XS+3}], s30 offen lds', 'X')
    e.stamp(1)
    MB = 16
    T0 = 232
    e('s_mul_i32 s31, s24, 48\ns_lshl_b32 s32, s26, 4\ns_add_u32 s31, s31, s32')
    e(f'v_add_u32 v7, s31, v3')
    e(f'v_cvt_f32_u32 v{T0}, v7')
    e(f'v_cvt_f32_u32 v{T0+1}, v4\nv_mul_f32 v{T0+1}, {lit(8.0)}, v{T0+1}')
    e(f'v_cmp_eq_u32 vcc, 0, v7\nv_mov_b32 v{T0+2}, {lit(288.0)}\nv_mov_b32 v{T0+3}, {lit(0.25)}')
    e(f'v_cndmask_b32 v{T0+2}, v{T0}, v{T0+2}, vcc\nv_cndmask_b32 v{T0+3}, v{T0+3}, 0, vcc' .replace(f'v_cndmask_b32 v{T0+3}, v{T0+3}, 0, vcc', f'v_mov_b32 v{T0+4}, 0\nv_cndmask_b32 v{T0+3}, v{T0+3}, v{T0+4}, vcc'))
    ONES = 160
    for r in range(4): e(f'v_mov_b32 v{ONES+r}, 0x3f803f80')
    EP = 164
    par = {}
    for c in range(2):
        kap = T0 if c == 0 else T0+2
        B_, A_, DA_, TC = T0+5+4*c, T0+6+4*c, T0+7+4*c, T0+8+4*c
        par[c] = (B_, A_, DA_, TC)
        e(f'v_mul_f32 v{B_}, {lit(1.0/576)}, v{kap}')
        e(f'v_mul_f32 v{A_}, v{B_}, v{T0+1}')
        if c == 1: e(f'v_add_f32 v{A_}, v{A_}, v{T0+3}')
        e(f'v_fract_f32 v{A_}, v{A_}')
        e(f'v_mul_f32 v{DA_}, {lit(32.0)}, v{B_}\nv_fract_f32 v{DA_}, v{DA_}')
        e(f'v_cos_f32 v{TC}, v{B_}\ns_nop 0\nv_add_f32 v{TC}, v{TC}, v{TC}')
    CH = T0+13
    for q in range(18):
        for c in range(2):
            B_, A_, DA_, TC = par[c]
            if q: e(f'v_add_f32 v{A_}, v{A_}, v{DA_}\nv_fract_f32 v{A_}, v{A_}')
            e(f'v_add_f32 v{CH+8}, v{A_}, v{B_}')
            e(f'v_cos_f32 v{CH}, v{A_}\nv_cos_f32 v{CH+1}, v{CH+8}')
            e('s_nop 0')
            for j in range(2, 8): e(f'v_fma_f32 v{CH+j}, v{TC}, v{CH+j-1}, -v{CH+j-2}')
            m = MB + c*72 + 4*q
            for j in range(4): e(f'v_cvt_pk_bf16_f32 v{m+j}, v{CH+2*j}, v{CH+2*j+1}')
            d = EP + 4*c
            cc = '0' if q == 0 else f'v[{d}:{d+3}]'
            e(f'v_mfma_f32_16x16x32_bf16 v[{d}:{d+3}], v[{ONES}:{ONES+3}], v[{m}:{m+3}], {cc}')
    FA = 172
    def fa(ft, p, c): return FA + ((ft*2+p)*2+c)*4
    e('s_lshl_b32 s33, s23, 1\ns_add_u32 s33, s33, s25')
    e(f'v_cvt_f32_u32 v{T0}, v3')
    e(f'v_cvt_f32_u32 v{T0+1}, v4\nv_cvt_f32_u32 v{T0+2}, s33')
    e(f'v_fmamk_f32 v{T0+1}, v{T0+1}, {lit(256.0)}, v{T0+2}')
    for ft in range(2):
        if ft: e(f'v_add_f32 v{T0+3}, {lit(16.0)}, v{T0}')
        else: e(f'v_mov_b32 v{T0+3}, v{T0}')
        e(f'v_mul_f32 v{T0+3}, {lit(1.0/2048)}, v{T0+3}')
        e(f'v_mul_f32 v{T0+4}, v{T0+3}, v{T0+1}')
        for p in range(2):
            for r in range(4):
                kk = 64*(16*p + r)
                a = T0+5
                if kk: e(f'v_fmamk_f32 v{a}, v{T0+3}, {lit(float(kk))}, v{T0+4}')
                else: e(f'v_mov_b32 v{a}, v{T0+4}')
                e(f'v_cos_f32 v{T0+6}, v{a}\nv_sin_f32 v{T0+7}, v{a}')
                e(f'v_cvt_pk_bf16_f32 v{fa(ft,p,0)+r}, v{T0+6}, v{T0+7}')
                e(f'v_cvt_pk_bf16_f32 v{fa(ft,p,1)+r}, -v{T0+7}, v{T0+6}')
    e.stamp(2)
    e.wait_vm('X'); e.stamp(3); e('s_barrier'); e.stamp(4)
    e('v_add_u32 v8, 36864, v5')
    def lds_frag(mt, q):
        idx = mt*18 + q
        return (5, idx*1024) if idx < 36 else (8, (idx-36)*1024)
    e('s_cmp_ge_u32 s22, 4')
    e(f's_cbranch_scc1 {name}_nostat')
    e('s_mul_i32 s34, s22, 18432\nv_add_u32 v9, s34, v5')
    SB = 204
    e('s_mov_b32 s35, 0x3f803f80')
    for k in range(4): e(f'v_mov_b32 v{228+k}, 0')
    for q in range(6): e.ds(f'ds_read_b128 v[{SB+4*q}:{SB+4*q+3}], v9 offset:{q*1024}', ('S', q))
    for q in range(18):
        e.wait_ds(('S', q))
        b = SB + 4*(q % 6)
        for k in range(4):
            e(f'v_dot2_f32_bf16 v{228+(k&1)}, v{b+k}, s35, v{228+(k&1)}')
            e(f'v_dot2_f32_bf16 v{230+(k&1)}, v{b+k}, v{b+k}, v{230+(k&1)}')
        if q + 6 < 18: e.ds(f'ds_read_b128 v[{b}:{b+3}], v9 offset:{(q+6)*1024}', ('S', q+6))
    e('v_add_f32 v228, v228, v229\nv_add_f32 v230, v230, v231')
    for reg in (228, 230):
        e(f'v_mov_b32 v{reg+1}, v{reg}\ns_nop 1\nv_permlane32_swap_b32 v{reg}, v{reg+1}\nv_add_f32 v{reg}, v{reg}, v{reg+1}')
        e(f'v_mov_b32 v{reg+1}, v{reg}\ns_nop 1\nv_permlane16_swap_b32 v{reg}, v{reg+1}\nv_add_f32 v{reg}, v{reg}, v{reg+1}')
    stats_tail(e, 228, 230, T0, 576)
    e(f's_lshl_b32 s36, s22, 7\nv_lshlrev_b32 v10, 3, v3\nv_add_u32 v10, s36, v10\nv_add_u32 v10, 73728, v10')
    e(f'v_mov_b32 v{T0+4}, v{T0+1}\nv_mov_b32 v{T0+5}, v{T0+2}')
    e.ds(f'ds_write_b64 v10, v[{T0+4}:{T0+5}]')
    e.wait_all_ds()
    e.label(f'{name}_nostat')
    e.stamp(5)
    e.lq = []
    ACC = 204
    AB = 220
    XB = 172 - 0
    XF = 236
    XF = 208 + 0
    return e, locals()

def gen_k1_full(name='k1_kernel', side=True):
    e, L = gen_k1(name, side)
    WS, XS, WRS, WIS = L['WS'], L['XS'], L['WRS'], L['WIS']
    MB, EP, FA, fa, T0, lds_frag, NMAIN = L['MB'], L['EP'], L['FA'], L['fa'], L['T0'], L['lds_frag'], L['NMAIN']
    ACC = 204
    XF = 220
    e('s_mul_i32 s34, s25, 36864\nv_add_u32 v9, s34, v5')
    def rd(q):
        for p in range(2):
            b = XF + ((q % 3)*2 + p)*4
            e.ds(f'ds_read_b128 v[{b}:{b+3}], v9 offset:{(p*18+q)*1024}', ('A', q, p))
    rd(0); rd(1)
    for q in range(18):
        e.wait_ds(('A', q, 1))
        for p in range(2):
            b = XF + ((q % 3)*2 + p)*4
            for c in range(2):
                a = ACC + (p*2+c)*4
                m = MB + c*72 + 4*q
                cc = '0' if q == 0 else f'v[{a}:{a+3}]'
                e(f'v_mfma_f32_16x16x32_bf16 v[{a}:{a+3}], v[{b}:{b+3}], v[{m}:{m+3}], {cc}')
        if q + 2 < 18: rd(q+2)
    e.stamp(6)
    e('s_barrier')
    e.stamp(7)
    ST = 16
    e('v_lshlrev_b32 v10, 5, v4')
    e('s_lshl_b32 s36, s25, 8\nv_add_u32 v10, s36, v10\nv_add_u32 v10, 73728, v10')
    for p in range(2):
        e.ds(f'ds_read_b128 v[{ST+8*p}:{ST+8*p+3}], v10 offset:{p*128}', ('T', p))
        e.ds(f'ds_read_b128 v[{ST+8*p+4}:{ST+8*p+7}], v10 offset:{p*128+16}', ('T', p))
    BF = 32
    for p in range(2):
        e.wait_ds(('T', p))
        for r in range(4):
            m, ri = ST + 8*p + 2*r, ST + 8*p + 2*r + 1
            for c in range(2):
                a = ACC + (p*2+c)*4 + r
                e(f'v_fma_f32 v{a}, -v{m}, v{EP+4*c}, v{a}\nv_mul_f32 v{a}, v{a}, v{ri}')
            e(f'v_cvt_pk_bf16_f32 v{BF+4*p+r}, v{ACC+(p*2)*4+r}, v{ACC+(p*2+1)*4+r}')
    D2 = 40
    for p in range(2):
        for ft in range(2):
            for c in range(2):
                d = D2 + (ft*2+c)*4
                cc = '0' if p == 0 else f'v[{d}:{d+3}]'
                e(f'v_mfma_f32_16x16x32_bf16 v[{d}:{d+3}], v[{fa(ft,p,c)}:{fa(ft,p,c)+3}], v[{BF+4*p}:{BF+4*p+3}], {cc}')
    e('v_lshlrev_b32 v11, 7, v3\nv_lshl_add_u32 v11, v4, 4, v11')
    e(f's_mul_i32 s37, s33, 36864\ns_lshl_b32 s38, s31, 7\ns_add_u32 s37, s37, s38\ns_add_u32 s37, s37, {OFF_T}')
    OB = 56
    for ft in range(2):
        for r in range(4):
            e(f'v_cvt_pk_bf16_f32 v{OB+4*ft+r}, v{D2+(ft*2)*4+r}, v{D2+(ft*2+1)*4+r}')
        e.vm(f'buffer_store_dwordx4 v[{OB+4*ft}:{OB+4*ft+3}], v11, s[{WS}:{WS+3}], s37 offen offset:{ft*64} {SC}')
    e.stamp(8)
    e(f's_branch {name}_end')
    if side:
        e.label(f'{name}_side')
        e.vq = []; e.lq = []
        e(f's_sub_u32 s23, s2, {NMAIN}')
        e('s_waitcnt lgkmcnt(0)')
        srd_ws(e, WS, 4, WS_END)
        srd_ws(e, WRS, 20, S*289*2)
        srd_ws(e, WIS, 42, S*289*2)
        e('s_mul_i32 s24, s23, 18496')
        for arr, srd in ((0, WRS), (1, WIS)):
            for t in range(4):
                if t == 3:
                    e(f's_cmp_lg_u32 s22, 0\ns_cbranch_scc1 {name}_skip{arr}')
                e(f's_lshl_b32 s25, s22, 10\ns_add_u32 s25, s25, {t*6*1024}')
                e(f's_add_u32 s26, s25, s24')
                e(f's_add_u32 m0, s25, {arr*19456}\ns_nop 0')
                e.vm(f'buffer_load_dwordx4 v5, s[{srd}:{srd+3}], s26 offen lds', 'D')
                if t == 3: e.label(f'{name}_skip{arr}')
        e(f's_cmp_lg_u32 s22, 5\ns_cbranch_scc1 {name}_nopq')
        e('v_cmp_gt_u32 vcc, 32, v1\ns_and_saveexec_b64 s[30:31], vcc')
        e('s_lshl_b32 s27, s23, 5\nv_add_u32 v6, s27, v1')
        e('v_sub_u32 v7, 0, v6\nv_and_b32 v7, 2047, v7')
        e('v_mul_u32_u24 v8, 578, v6\nv_mul_u32_u24 v9, 578, v7')
        k = 16
        for vo in (8, 9):
            for col in (0, 576):
                e.vm(f'buffer_load_ushort v{k}, v{vo}, s[{WRS}:{WRS+3}], 0 offen offset:{col}', 'PQ'); k += 1
                e.vm(f'buffer_load_ushort v{k}, v{vo}, s[{WIS}:{WIS+3}], 0 offen offset:{col}', 'PQ'); k += 1
        e.wait_vm('PQ')
        for k in range(16, 24): e(f'v_lshlrev_b32 v{k}, 16, v{k}')
        e('v_add_f32 v24, v16, v20\nv_sub_f32 v25, v17, v21\nv_add_f32 v26, v18, v22\nv_sub_f32 v27, v19, v23')
        e('v_add_f32 v28, v24, v26\nv_add_f32 v29, v25, v27\nv_sub_f32 v30, v24, v26\nv_sub_f32 v31, v25, v27')
        for k in range(28, 32): e(f'v_mul_f32 v{k}, {lit(0.25)}, v{k}')
        e('v_cvt_pk_bf16_f32 v32, v28, v29\nv_cvt_pk_bf16_f32 v33, v30, v31')
        e('v_lshlrev_b32 v10, 2, v6')
        e(f's_mov_b32 s28, {OFF_WT}\ns_mov_b32 s29, {OFF_QT}')
        e.vm(f'buffer_store_dword v32, v10, s[{WS}:{WS+3}], s28 offen')
        e.vm(f'buffer_store_dword v33, v10, s[{WS}:{WS+3}], s29 offen')
        e('s_mov_b64 exec, s[30:31]')
        e.label(f'{name}_nopq')
        e('s_waitcnt vmcnt(0)\ns_barrier'); e.vq = []
        e('v_and_b32 v6, 31, v1\nv_lshrrev_b32 v7, 5, v1')
        e('s_lshl_b32 s27, s22, 1\nv_add_u32 v8, s27, v7')
        e('v_mul_u32_u24 v9, 289, v6\nv_add_u32 v9, v9, v8\nv_lshlrev_b32 v9, 1, v9')
        e('v_lshlrev_b32 v10, 13, v7\nv_lshl_add_u32 v10, v6, 2, v10')
        e('v_cmp_eq_u32 vcc, 0, v8\nv_mov_b32 v11, 0x7fffff00\ns_nop 0\nv_cndmask_b32 v11, v10, v11, vcc')
        e(f's_lshl_b32 s28, s23, 7\ns_lshl_b32 s29, s22, 14\ns_add_u32 s28, s28, s29\ns_add_u32 s28, s28, {OFF_WT}')
        for m0_ in range(0, 24, 6):
            for m in range(m0_, m0_+6):
                r = 16 + (m % 6)
                e.ds(f'ds_read_u16 v{r}, v9 offset:{m*24}', ('G', m))
                e.ds(f'ds_read_u16 v{r+6}, v9 offset:{19456 + m*24}', ('G', m))
            for m in range(m0_, m0_+6):
                r = 16 + (m % 6)
                e.wait_ds(('G', m))
                e(f'v_lshl_or_b32 v{r}, v{r+6}, 16, v{r}')
                e(f's_add_u32 s30, s28, {m*12*8192}')
                e.vm(f'buffer_store_dword v{r}, v{11 if m == 0 else 10}, s[{WS}:{WS+3}], s30 offen')
            e('s_nop 1')
    e.label(f'{name}_end')
    e.prof_dump(0, name)
    e.label(f'{name}_exit')
    e('s_endpgm')
    return kernel_header(name) + e.text(verbose=True) + kernel_desc(name, 256)

if __name__ == '__main__':
    t = gen_k1_full()
    open('k1.s', 'w').write('; @launch kernel=k1_kernel grid=(256,1,1) block=(384,1,1) lds=74240\n.amdgcn_target "amdgcn-amd-amdhsa--gfx950"\n' + t)
```

```python
from asmlib import *
from layout import *
from k4 import srd_ws

def gen_k2(name='k2_kernel', side=True):
    e = Emit()
    WS = 8; W1S = 12; W2S = 16
    NMAIN = 72; NSIDE = 144
    e(f's_cmp_ge_u32 s2, {NMAIN + (NSIDE if side else 0)}')
    e(f's_cbranch_scc1 {name}_exit')
    e.prof_init()
    e('s_load_dwordx2 s[4:5], s[0:1], 80')
    e('s_load_dwordx2 s[6:7], s[0:1], 32')
    e('s_load_dwordx2 s[20:21], s[0:1], 48')
    e('v_lshrrev_b32 v2, 6, v0')
    e('v_and_b32 v1, 63, v0')
    e('v_readfirstlane_b32 s22, v2')
    e('v_lshlrev_b32 v5, 4, v1')
    if side:
        e(f's_cmp_ge_u32 s2, {NMAIN}')
        e(f's_cbranch_scc1 {name}_side')
    e('v_and_b32 v3, 31, v1')
    e('v_lshrrev_b32 v4, 5, v1')
    e('s_lshl_b32 s23, s2, 2\ns_add_u32 s23, s23, s22')
    e(f'v_mul_u32_u24 v6, {4*36864}, v4\nv_lshl_add_u32 v6, v3, 2, v6')
    e(f's_lshl_b32 s24, s23, 7')
    e('v_lshlrev_b32 v7, 9, v4\nv_lshl_add_u32 v7, v3, 2, v7')
    e(f's_lshl_b32 s25, s23, 13\ns_add_u32 s25, s25, {OFF_WT}\ns_add_u32 s26, s25, 4096')
    e('s_waitcnt lgkmcnt(0)')
    e.stamp(9)
    srd_ws(e, WS, 4, WS_END)
    TB = 16
    WB = 48
    e(f's_add_u32 s27, s24, {OFF_T}')
    for st in range(8):
        t, g4 = st >> 2, st & 3
        for ii in range(4):
            s2 = 32*t + 8*g4 + ii
            e(f's_add_u32 s28, s27, {s2*36864}')
            e.vm(f'buffer_load_dword v{TB+st*4+ii}, v6, s[{WS}:{WS+3}], s28 offen', ('T', st))
    for m2 in range(2):
        for g4 in range(4):
            for ii in range(4):
                row = 8*g4 + ii
                e.vm(f'buffer_load_dword v{WB+(m2*4+g4)*4+ii}, v7, s[{WS}:{WS+3}], s{25+m2} offen offset:{row*128}', ('W', m2))
    e.stamp(1)
    T0 = 240
    e('s_lshr_b32 s29, s22, 1\ns_and_b32 s30, s22, 1')
    e('s_lshl_b32 s31, s29, 5')
    e(f'v_add_u32 v{T0}, s31, v3\nv_cvt_f32_u32 v{T0}, v{T0}\nv_mul_f32 v{T0}, {lit(1.0/64)}, v{T0}')
    e(f's_lshl_b32 s32, s30, 5\nv_lshl_add_u32 v{T0+1}, v4, 2, s32\nv_cvt_f32_u32 v{T0+1}, v{T0+1}')
    e(f'v_mul_f32 v{T0+1}, v{T0}, v{T0+1}')
    e(f's_lshl_b32 s33, s29, 14\ns_lshl_b32 s34, s30, 12\ns_add_u32 s33, s33, s34')
    e('v_add_u32 v8, s33, v5')
    FR = 80
    for g4 in range(4):
        fr = FR + (g4 & 1)*8
        for ii in range(4):
            kk = 8*g4 + ii
            a = T0+2
            if kk: e(f'v_fmamk_f32 v{a}, v{T0}, {lit(float(kk))}, v{T0+1}')
            else: e(f'v_mov_b32 v{a}, v{T0+1}')
            e(f'v_cos_f32 v{T0+3}, v{a}\nv_sin_f32 v{T0+4}, v{a}')
            e(f'v_cvt_pk_bf16_f32 v{fr+ii}, v{T0+3}, v{T0+4}')
            e(f'v_cvt_pk_bf16_f32 v{fr+4+ii}, -v{T0+4}, v{T0+3}')
        e.ds(f'ds_write_b128 v8, v[{fr}:{fr+3}] offset:{g4*1024}')
        e.ds(f'ds_write_b128 v8, v[{fr+4}:{fr+7}] offset:{8*1024 + g4*1024}')
    e.stamp(2)
    e.wait_all_ds(); e('s_barrier')
    e.stamp(3)
    AF = 80
    def dft(D, B, pre=None, post=None):
        seq = [(m2, c, st) for m2 in range(2) for st in range(8) for c in range(2)]
        def rd(i):
            m2, c, st = seq[i]
            b = AF + (i % 8)*4
            e.ds(f'ds_read_b128 v[{b}:{b+3}], v5 offset:{((m2*2+c)*8+st)*1024}', ('A', i))
        LA = 6
        for i in range(LA): rd(i)
        for i, (m2, c, st) in enumerate(seq):
            if pre: pre(i, m2, c, st)
            e.wait_ds(('A', i))
            b = AF + (i % 8)*4
            d = D + (m2*2+c)*16
            cc = '0' if st == 0 else f'v[{d}:{d+15}]'
            e(f'v_mfma_f32_32x32x16_bf16 v[{d}:{d+15}], v[{b}:{b+3}], v[{B+st*4}:{B+st*4+3}], {cc}')
            if i + LA < len(seq): rd(i + LA)
            if post: post(i, m2, c, st)
    Z = 112
    def pre_f(i, m2, c, st):
        if m2 == 0 and c == 0: e.wait_vm(('T', st))
    dft(Z, TB, pre=pre_f)
    e.stamp(4)
    e.wait_vm(('W', 1))
    e('s_cmp_eq_u32 s23, 0')
    e(f's_cbranch_scc1 {name}_k0')
    TM = 240
    for m2 in range(2):
        for r in range(16):
            zr = Z + (m2*2)*16 + r; zi = Z + (m2*2+1)*16 + r
            w = WB + m2*16 + r
            tm = TM + (r & 1)*4
            e(f'v_lshlrev_b32 v{tm}, 16, v{w}\nv_and_b32 v{tm+1}, 0xffff0000, v{w}')
            e(f'v_mul_f32 v{tm+2}, v{zr}, v{tm}\nv_mul_f32 v{tm+3}, v{zr}, v{tm+1}')
            e(f'v_fma_f32 v{tm+2}, -v{zi}, v{tm+1}, v{tm+2}\nv_fma_f32 v{tm+3}, v{zi}, v{tm}, v{tm+3}')
            e(f'v_cvt_pk_bf16_f32 v{TB+m2*16+r}, v{tm+2}, -v{tm+3}')
    e.label(f'{name}_wdone')
    e.stamp(5)
    D2 = 176
    dft(D2, TB)
    e.stamp(6)
    e(f's_add_u32 s27, s24, {OFF_V}')
    for m2 in range(2):
        for r in range(16):
            g4, ii = r >> 2, r & 3
            s2 = 32*m2 + 8*g4 + ii
            o = WB + m2*16 + r
            e(f'v_cvt_pk_bf16_f32 v{o}, v{D2+(m2*2)*16+r}, -v{D2+(m2*2+1)*16+r}')
            e(f's_add_u32 s28, s27, {s2*36864}')
            e.vm(f'buffer_store_dword v{o}, v6, s[{WS}:{WS+3}], s28 offen')
    e.stamp(7)
    e(f's_branch {name}_end')
    e.label(f'{name}_k0')
    e.lq = []
    QB = 80
    e(f's_mov_b32 s35, {OFF_QT}\ns_add_u32 s36, s35, 4096')
    e.vq = []
    for m2 in range(2):
        for r in range(16):
            row = 8*(r >> 2) + (r & 3)
            e.vm(f'buffer_load_dword v{QB+m2*16+r}, v7, s[{WS}:{WS+3}], s{35+m2} offen offset:{row*128}', 'Q')
    e('v_lshlrev_b32 v9, 3, v3\nv_lshl_add_u32 v9, v4, 10, v9\nv_add_u32 v10, 32768, v9')
    for m2 in range(2):
        for r in range(16):
            row = 32*m2 + 8*(r >> 2) + (r & 3)
            e(f'v_mov_b32 v{TM}, v{Z+(m2*2)*16+r}\nv_mov_b32 v{TM+1}, v{Z+(m2*2+1)*16+r}')
            e.ds(f'ds_write_b64 v10, v[{TM}:{TM+1}] offset:{row*256}')
    e.wait_all_ds()
    e.wait_vm('Q')
    for m2 in range(2):
        for r in range(16):
            row = 32*m2 + 8*(r >> 2) + (r & 3)
            zr = Z + (m2*2)*16 + r; zi = Z + (m2*2+1)*16 + r
            p = WB + m2*16 + r; q = QB + m2*16 + r
            e(f'v_add_u32 v11, {row*256}, v9\nv_sub_u32 v11, 0, v11\nv_and_b32 v11, 16383, v11\nv_add_u32 v11, 32768, v11')
            e.ds(f'ds_read_b64 v[{TM}:{TM+1}], v11', 'zm')
            e(f'v_lshlrev_b32 v{TM+2}, 16, v{p}\nv_and_b32 v{TM+3}, 0xffff0000, v{p}')
            e(f'v_lshlrev_b32 v{TM+4}, 16, v{q}\nv_and_b32 v{TM+5}, 0xffff0000, v{q}')
            e(f'v_mul_f32 v{TM+6}, v{zr}, v{TM+2}\nv_mul_f32 v{TM+7}, v{zr}, v{TM+3}')
            e(f'v_fma_f32 v{TM+6}, -v{zi}, v{TM+3}, v{TM+6}\nv_fma_f32 v{TM+7}, v{zi}, v{TM+2}, v{TM+7}')
            e.wait_ds('zm')
            e(f'v_fma_f32 v{TM+6}, v{TM}, v{TM+4}, v{TM+6}\nv_fma_f32 v{TM+6}, v{TM+1}, v{TM+5}, v{TM+6}')
            e(f'v_fma_f32 v{TM+7}, v{TM}, v{TM+5}, v{TM+7}\nv_fma_f32 v{TM+7}, -v{TM+1}, v{TM+4}, v{TM+7}')
            e(f'v_cvt_pk_bf16_f32 v{TB+m2*16+r}, v{TM+6}, -v{TM+7}')
    e('s_nop 1')
    e(f's_branch {name}_wdone')
    if side:
        e.label(f'{name}_side')
        e.vq = []; e.lq = []
        e(f's_sub_u32 s23, s2, {NMAIN}')
        e('s_and_b32 s24, s23, 7')
        e('s_lshr_b32 s25, s23, 3\ns_lshl_b32 s25, s25, 2\ns_add_u32 s25, s25, s22')
        e(f's_mul_hi_u32 s26, s25, {(2**32+17)//18}')
        e('s_mul_i32 s27, s26, 18\ns_sub_u32 s27, s25, s27')
        e('s_waitcnt lgkmcnt(0)')
        srd_ws(e, WS, 4, WS_END)
        srd_ws(e, W1S, 6, D*F*2)
        srd_ws(e, W2S, 20, D*F*2)
        e('s_mul_i32 s28, s27, 294912\ns_mul_i32 s29, s24, 1152\ns_add_u32 s28, s28, s29\ns_mul_i32 s29, s26, 288\ns_add_u32 s28, s28, s29')
        e('s_and_b32 s30, s27, 1\ns_mul_i32 s30, s30, 288\ns_lshr_b32 s31, s27, 1\ns_lshl_b32 s31, s31, 4\ns_add_u32 s30, s30, s31')
        e('s_mul_i32 s31, s24, 576\ns_add_u32 s30, s30, s31\ns_mul_i32 s30, s30, 1152\ns_add_u32 s30, s30, s29')
        e('s_mul_i32 s32, s22, 18432')
        for m in range(9):
            e(f'v_add_u32 v6, {64*m}, v1')
            e(f'v_mul_u32_u24 v7, 3641, v6\nv_lshrrev_b32 v7, 16, v7')
            e('v_mul_u32_u24 v8, 18, v7\nv_sub_u32 v8, v6, v8\nv_lshlrev_b32 v8, 4, v8')
            e(f'v_mul_u32_u24 v9, 9216, v7\nv_add_u32 v{16+m}, v9, v8')
            e('v_cmp_le_u32 vcc, 16, v7\nv_mov_b32 v10, 128\ns_nop 0\nv_cndmask_b32 v10, 0, v10, vcc\nv_add_u32 v10, v10, v7')
            e(f'v_mul_u32_u24 v10, 1152, v10\nv_add_u32 v{32+m}, v10, v8')
        for m in range(9):
            e(f's_add_u32 m0, s32, {m*1024}\ns_nop 0')
            e.vm(f'buffer_load_dwordx4 v{16+m}, s[{W1S}:{W1S+3}], s28 offen lds', 'D1')
        for m in range(9):
            e(f's_add_u32 m0, s32, {9216 + m*1024}\ns_nop 0')
            e.vm(f'buffer_load_dwordx4 v{32+m}, s[{W2S}:{W2S+3}], s30 offen lds', 'D2')
        e('v_lshrrev_b32 v6, 2, v1\nv_mul_u32_u24 v6, 288, v6\nv_and_b32 v7, 3, v1\nv_lshl_add_u32 v6, v7, 3, v6\nv_add_u32 v6, s32, v6')
        e(f's_lshl_b32 s33, s24, 2\ns_add_u32 s33, s33, s26\ns_mul_i32 s33, s33, {162*1024}')
        e(f's_lshl_b32 s34, s27, 10\ns_add_u32 s34, s34, s33\ns_add_u32 s34, s34, {OFF_W1P}')
        e(f's_mul_i32 s35, s27, 9216\ns_add_u32 s35, s35, s33\ns_add_u32 s35, s35, {OFF_W2P}')
        e.stamp(1)
        for which, tag in ((0, 'D1'), (1, 'D2')):
            e.wait_vm(tag)
            e.stamp(2+which)
            for p in range(9):
                b = 48 + (which*9+p)*4
                e.ds(f'ds_read_b64_tr_b16 v[{b}:{b+1}], v6 offset:{which*9216 + p*32}', ('R', which, p))
                e.ds(f'ds_read_b64_tr_b16 v[{b+2}:{b+3}], v6 offset:{which*9216 + p*32 + 16*288}', ('R', which, p))
            for p in range(9):
                b = 48 + (which*9+p)*4
                e.wait_ds(('R', which, p))
                if which == 0:
                    e(f's_add_u32 s36, s34, {p*18*1024}')
                else:
                    e(f's_add_u32 s36, s35, {p*1024}')
                e.vm(f'buffer_store_dwordx4 v[{b}:{b+3}], v5, s[{WS}:{WS+3}], s36 offen')
    e.label(f'{name}_end')
    e.prof_dump(1, name)
    e.label(f'{name}_exit')
    e('s_endpgm')
    return kernel_header(name) + e.text(verbose=True) + kernel_desc(name, 256)

if __name__ == '__main__':
    t = gen_k2()
    open('k2.s', 'w').write('; @launch kernel=k2_kernel grid=(216,1,1) block=(256,1,1) lds=73728\n.amdgcn_target "amdgcn-amd-amdhsa--gfx950"\n' + t)
```

```python
from asmlib import *
from layout import *
SC = 'sc1'
from k4 import srd_ws

def stats_tail(e, S1, S2, T, n, emit=None):
    E = emit or e
    E(f'v_mul_f32 v{S1}, {lit(1.0/n)}, v{S1}')
    E(f'v_mul_f32 v{S2}, {lit(1.0/n)}, v{S2}')
    E(f'v_fma_f32 v{S2}, -v{S1}, v{S1}, v{S2}')
    E(f'v_max_f32 v{S2}, 0, v{S2}')
    E(f'v_cvt_pk_bf16_f32 v{T}, v{S1}, v{S2}')
    E(f'v_lshlrev_b32 v{T+1}, 16, v{T}')
    E(f'v_and_b32 v{T+2}, 0xffff0000, v{T}')
    E(f'v_add_f32 v{T+2}, {lit(1e-5)}, v{T+2}')
    E(f'v_cvt_pk_bf16_f32 v{T+2}, v{T+2}, v{T+2}')
    E(f'v_and_b32 v{T+2}, 0xffff0000, v{T+2}')
    E(f'v_sqrt_f32 v{T+2}, v{T+2}')
    E(f'v_cvt_pk_bf16_f32 v{T+2}, v{T+2}, v{T+2}')
    E(f'v_and_b32 v{T+2}, 0xffff0000, v{T+2}')
    E(f'v_rcp_f32 v{T+2}, v{T+2}')

def gen_k3(name='k3_kernel', side=True):
    e = Emit()
    WS = 8; XS = 12; B1S = 16
    NMAIN = 192; NSIDE = 48
    e(f's_cmp_ge_u32 s2, {NMAIN + (NSIDE if side else 0)}')
    e(f's_cbranch_scc1 {name}_exit')
    e.prof_init()
    e('s_load_dwordx2 s[4:5], s[0:1], 80')
    e('s_load_dwordx2 s[6:7], s[0:1], 0')
    e('s_load_dwordx2 s[20:21], s[0:1], 40')
    e('v_lshrrev_b32 v2, 6, v0')
    e('v_and_b32 v1, 63, v0')
    e('v_readfirstlane_b32 s22, v2')
    e('v_and_b32 v3, 15, v1')
    e('v_lshrrev_b32 v4, 4, v1')
    e('v_lshlrev_b32 v5, 4, v1')
    if side:
        e(f's_cmp_ge_u32 s2, {NMAIN}')
        e(f's_cbranch_scc1 {name}_side')
    e('s_and_b32 s23, s2, 31')
    e('s_lshr_b32 s24, s2, 5')
    e('s_cmp_ge_u32 s22, 3\ns_cselect_b32 s25, 1, 0')
    e('s_mul_i32 s26, s25, 3\ns_sub_u32 s26, s22, s26')
    e('s_lshl_b32 s27, s23, 1\ns_add_u32 s27, s27, s25')
    e(f's_mul_i32 s28, s27, 36864\ns_mul_i32 s29, s26, {6*2048}\ns_add_u32 s28, s28, s29\ns_add_u32 s28, s28, {OFF_V}')
    e('v_lshlrev_b32 v6, 7, v3\nv_lshl_add_u32 v6, v4, 4, v6')
    e('v_mov_b32 v7, 0\nv_lshlrev_b32 v8, 2, v0\nv_add_u32 v8, 73728, v8')
    e('v_cmp_gt_u32 vcc, 128, v0\ns_and_saveexec_b64 s[30:31], vcc')
    e(f's_cbranch_execz {name}_nz')
    e.ds('ds_write_b32 v8, v7')
    e.label(f'{name}_nz')
    e('s_mov_b64 exec, s[30:31]')
    e('s_waitcnt lgkmcnt(0)'); e.lq = []
    e.stamp(9)
    srd_ws(e, WS, 4, WS_END)
    srd_ws(e, XS, 6, S*D*2)
    VA = 16
    for kl in range(6):
        for p in range(2):
            b = VA + (kl*2+p)*4
            e.vm(f'buffer_load_dwordx4 v[{b}:{b+3}], v6, s[{WS}:{WS+3}], s28 offen offset:{(kl % 2)*2048 + p*64}', ('V', kl))
        if kl % 2 == 1: e('s_add_u32 s28, s28, 4096')
    XR = 64
    e('v_mul_u32_u24 v9, 73728, v3\nv_lshl_add_u32 v9, v4, 3, v9')
    e('s_mul_i32 s32, s24, 192\ns_lshl_b32 s33, s22, 5\ns_add_u32 s32, s32, s33')
    e('s_mul_i32 s33, s23, 2304\ns_add_u32 s32, s32, s33')
    for mt in range(4):
        si, nt = mt >> 1, mt & 1
        e(f's_add_u32 s33, s32, {si*1152 + nt*16*73728}')
        e.vm(f'buffer_load_dwordx2 v[{XR+2*mt}:{XR+2*mt+1}], v9, s[{XS}:{XS+3}], s33 offen', ('X', mt))
    e.stamp(1)
    GB = 72
    def gb(nt, p, c): b = GB + ((nt*2+p)*2+c)*4; return b
    T0 = 240
    e(f'v_cvt_f32_u32 v{T0}, v3')
    e(f'v_cvt_f32_u32 v{T0+1}, v4')
    e(f'v_cvt_f32_u32 v{T0+2}, s27')
    e(f'v_mul_f32 v{T0+1}, 4.0, v{T0+1}')
    for nt in range(2):
        e(f'v_fmamk_f32 v{T0+3}, v{T0}, {lit(64.0)}, v{T0+2}')
        if nt: e(f'v_add_f32 v{T0+3}, {lit(1024.0)}, v{T0+3}')
        e(f'v_mul_f32 v{T0+3}, {lit(1.0/2048)}, v{T0+3}')
        e(f'v_mul_f32 v{T0+4}, v{T0+3}, v{T0+1}')
        for p in range(2):
            for r in range(4):
                kk = 16*p + r
                a = T0+5+r
                if kk: e(f'v_fmamk_f32 v{a}, v{T0+3}, {lit(float(kk))}, v{T0+4}')
                else: e(f'v_mov_b32 v{a}, v{T0+4}')
            for r in range(4):
                e(f'v_cos_f32 v{T0+9+(r&1)*2}, v{T0+5+r}')
                e(f'v_sin_f32 v{T0+10+(r&1)*2}, v{T0+5+r}')
                c, s = T0+9+(r&1)*2, T0+10+(r&1)*2
                e(f's_nop 0')
                e(f'v_cvt_pk_bf16_f32 v{gb(nt,p,0)+r}, v{c}, -v{s}')
                e(f'v_cvt_pk_bf16_f32 v{gb(nt,p,1)+r}, v{s}, v{c}')
    MA = 104
    e('s_mul_i32 s34, s24, 96\ns_lshl_b32 s35, s22, 4\ns_add_u32 s34, s34, s35')
    e(f'v_add_u32 v{T0}, s34, v3\nv_cvt_f32_u32 v{T0}, v{T0}')
    e(f'v_mul_f32 v{T0+2}, {lit(1.0/576)}, v{T0}')
    e(f'v_mul_f32 v{T0+3}, v{T0+2}, v{T0+1}\nv_fract_f32 v{T0+3}, v{T0+3}')
    e(f'v_mul_f32 v{T0+4}, {lit(16.0)}, v{T0+2}\nv_fract_f32 v{T0+4}, v{T0+4}')
    e(f'v_cos_f32 v{T0+5}, v{T0+2}\ns_nop 0\nv_add_f32 v{T0+5}, v{T0+5}, v{T0+5}')
    C0, S0, C1, S1, C2, S2_, C3, S3, A1 = (T0+6+i for i in range(9))
    for kt in range(18):
        if kt: e(f'v_add_f32 v{T0+3}, v{T0+3}, v{T0+4}\nv_fract_f32 v{T0+3}, v{T0+3}')
        e(f'v_add_f32 v{A1}, v{T0+3}, v{T0+2}')
        e(f'v_cos_f32 v{C0}, v{T0+3}\nv_sin_f32 v{S0}, v{T0+3}\nv_cos_f32 v{C1}, v{A1}\nv_sin_f32 v{S1}, v{A1}')
        e(f'v_cvt_pk_bf16_f32 v{MA+4*kt}, v{C0}, -v{S0}')
        e(f'v_fma_f32 v{C2}, v{T0+5}, v{C1}, -v{C0}')
        e(f'v_fma_f32 v{S2_}, v{T0+5}, v{S1}, -v{S0}')
        e(f'v_cvt_pk_bf16_f32 v{MA+4*kt+1}, v{C1}, -v{S1}')
        e(f'v_fma_f32 v{C3}, v{T0+5}, v{C2}, -v{C1}')
        e(f'v_fma_f32 v{S3}, v{T0+5}, v{S2_}, -v{S1}')
        e(f'v_cvt_pk_bf16_f32 v{MA+4*kt+2}, v{C2}, -v{S2_}')
        e(f'v_cvt_pk_bf16_f32 v{MA+4*kt+3}, v{C3}, -v{S3}')
    e(f'v_and_b32 v{T0}, 1, v3\nv_lshlrev_b32 v{T0}, 31, v{T0}\nv_or_b32 v{T0}, 0x3f003f00, v{T0}')
    e(f'v_cmp_eq_u32 vcc, 0, v4\ns_nop 1\nv_cndmask_b32 v{MA}, v{MA}, v{T0}, vcc')
    e.stamp(2)
    DA = 176
    PKA = 192
    e(f's_mul_i32 s36, s25, {2*18*1024}\ns_mul_i32 s37, s26, {6*1024}\ns_add_u32 s36, s36, s37')
    e('v_add_u32 v10, s36, v5')
    for kl in range(6):
        e.wait_vm(('V', kl))
        a0 = VA + kl*8
        for nt in range(2):
            for c in range(2):
                d = DA + (nt*2+c)*4
                e(f'v_mfma_f32_16x16x32_bf16 v[{d}:{d+3}], v[{a0}:{a0+3}], v[{gb(nt,0,c)}:{gb(nt,0,c)+3}], 0')
        for nt in range(2):
            for c in range(2):
                d = DA + (nt*2+c)*4
                e(f'v_mfma_f32_16x16x32_bf16 v[{d}:{d+3}], v[{a0+4}:{a0+7}], v[{gb(nt,1,c)}:{gb(nt,1,c)+3}], v[{d}:{d+3}]')
        for nt in range(2):
            pk = PKA + nt*4
            for r in range(4):
                e(f'v_cvt_pk_bf16_f32 v{pk+r}, v{DA+nt*8+r}, v{DA+nt*8+4+r}')
            e.ds(f'ds_write_b128 v10, v[{pk}:{pk+3}] offset:{(nt*18 + kl)*1024}')
    e.stamp(3)
    e.wait_all_ds(); e('s_barrier')
    e.stamp(4)
    ACC = 200
    BB = 16
    e('v_add_u32 v11, 36864, v5')
    def bread(kt, mt):
        idx = mt*18 + kt
        base, off = (5, idx*1024) if idx < 36 else (11, (idx-36)*1024)
        b = BB + ((kt % 3)*4 + mt)*4
        e.ds(f'ds_read_b128 v[{b}:{b+3}], v{base} offset:{off}', ('B', kt, mt))
    for kt in range(2):
        for mt in range(4): bread(kt, mt)
    for kt in range(18):
        e.wait_ds(('B', kt, 3))
        for mt in range(4):
            b = BB + ((kt % 3)*4 + mt)*4
            a = ACC + 4*mt
            c = '0' if kt == 0 else f'v[{a}:{a+3}]'
            e(f'v_mfma_f32_16x16x32_bf16 v[{a}:{a+3}], v[{MA+4*kt}:{MA+4*kt+3}], v[{b}:{b+3}], {c}')
            if kt + 2 < 18: bread(kt+2, mt)
    e.stamp(5)
    scale = 2.0/(2048*576)
    e.wait_vm(('X', 3))
    e('s_mul_i32 s38, s24, 6\ns_add_u32 s38, s38, s22')
    e('s_lshr_b32 s39, s38, 1\ns_lshl_b32 s39, s39, 10\ns_and_b32 s40, s38, 1\ns_lshl_b32 s40, s40, 3\ns_add_u32 s39, s39, s40')
    e(f's_mul_i32 s40, s23, 73728\ns_add_u32 s39, s39, s40\ns_add_u32 s39, s39, {OFF_H}')
    e('v_lshlrev_b32 v12, 3, v3\nv_add_u32 v12, 73728, v12')
    TE = 104
    for mt in range(4):
        a = ACC + 4*mt
        t = TE + mt*8
        for r in range(4): e(f'v_mul_f32 v{a+r}, {lit(scale)}, v{a+r}')
        e(f'v_cvt_pk_bf16_f32 v{t}, v{a}, v{a+1}\nv_cvt_pk_bf16_f32 v{t+1}, v{a+2}, v{a+3}')
        for k in range(2):
            e(f'v_lshlrev_b32 v{a+2*k}, 16, v{t+k}\nv_and_b32 v{a+2*k+1}, 0xffff0000, v{t+k}')
            x = XR + 2*mt + k
            e(f'v_lshlrev_b32 v{t+2}, 16, v{x}\nv_and_b32 v{t+3}, 0xffff0000, v{x}')
            e(f'v_add_f32 v{a+2*k}, v{a+2*k}, v{t+2}\nv_add_f32 v{a+2*k+1}, v{a+2*k+1}, v{t+3}')
        e(f'v_cvt_pk_bf16_f32 v{t+4}, v{a}, v{a+1}\nv_cvt_pk_bf16_f32 v{t+5}, v{a+2}, v{a+3}')
        e(f's_add_u32 s41, s39, {mt*18*1024}')
        e.vm(f'buffer_store_dwordx2 v[{t+4}:{t+5}], v5, s[{WS}:{WS+3}], s41 offen')
        e(f'v_dot2_f32_bf16 v{t+6}, v{t+4}, v{t+4}, 0\nv_dot2_f32_bf16 v{t+6}, v{t+5}, v{t+5}, v{t+6}')
        e(f's_mov_b32 s42, 0x3f803f80')
        e(f'v_dot2_f32_bf16 v{t+7}, v{t+4}, s42, 0\nv_dot2_f32_bf16 v{t+7}, v{t+5}, s42, v{t+7}')
        e.ds(f'ds_add_f32 v12, v{t+7} offset:{mt*128}')
        e.ds(f'ds_add_f32 v12, v{t+6} offset:{mt*128+4}')
    e.stamp(6)
    e.wait_all_ds(); e('s_barrier')
    e.stamp(7)
    e('v_cmp_gt_u32 vcc, 128, v0\ns_and_saveexec_b64 s[30:31], vcc')
    e(f's_cbranch_execz {name}_end')
    e.ds('ds_read_b32 v7, v8', 'st')
    e(f's_mul_i32 s43, s23, 6\ns_add_u32 s43, s43, s24\ns_lshl_b32 s43, s43, 9\ns_add_u32 s43, s43, {OFF_ST}')
    e('v_lshlrev_b32 v13, 2, v0')
    e.wait_ds('st')
    e.vm(f'buffer_store_dword v7, v13, s[{WS}:{WS+3}], s43 offen')
    e(f's_branch {name}_end')
    if side:
        e.label(f'{name}_side')
        e.vq = []; e.lq = []
        e(f's_sub_u32 s23, s2, {NMAIN}')
        e('s_and_b32 s24, s23, 7')
        e('s_lshr_b32 s25, s23, 3\ns_mul_i32 s25, s25, 6\ns_add_u32 s25, s25, s22')
        e('s_lshl_b32 s26, s24, 2')
        e('s_mul_i32 s27, s24, 36\ns_add_u32 s27, s27, s25')
        e(f's_mul_i32 s28, s27, {18*1024}\ns_add_u32 s28, s28, {OFF_W1P}')
        e('s_waitcnt lgkmcnt(0)')
        srd_ws(e, WS, 4, WS_END)
        srd_ws(e, B1S, 20, F*2)
        for q in range(18):
            e.vm(f'buffer_load_dwordx4 v[{16+4*q}:{19+4*q}], v5, s[{WS}:{WS+3}], s28 offen offset:{(q % 4)*1024}', ('W', q))
            if q % 4 == 3: e('s_add_u32 s28, s28, 4096')
        e('s_lshl_b32 s29, s27, 5\nv_lshlrev_b32 v6, 1, v3')
        e.vm(f'buffer_load_ushort v7, v6, s[{B1S}:{B1S+3}], s29 offen', 'b1')
        e('s_mov_b32 s30, 0x3f803f80')
        for k in range(4): e(f'v_mov_b32 v{96+k}, 0')
        for q in range(18):
            e.wait_vm(('W', q))
            for k in range(4): e(f'v_dot2_f32_bf16 v{96+k}, v{16+4*q+k}, s30, v{96+k}')
        e('v_add_f32 v96, v96, v97\nv_add_f32 v98, v98, v99\nv_add_f32 v96, v96, v98')
        e('v_mov_b32 v97, v96\ns_nop 1\nv_permlane32_swap_b32 v96, v97\nv_add_f32 v96, v96, v97')
        e('v_mov_b32 v97, v96\ns_nop 1\nv_permlane16_swap_b32 v96, v97\nv_add_f32 v96, v96, v97')
        e.wait_vm('b1')
        e('v_lshlrev_b32 v7, 16, v7')
        e('v_lshrrev_b32 v8, 2, v3\nv_lshlrev_b32 v8, 5, v8\nv_and_b32 v9, 3, v3\nv_lshl_add_u32 v8, v9, 2, v8')
        e(f's_lshl_b32 s31, s27, 7\ns_add_u32 s31, s31, {OFF_BC}')
        e('v_cmp_gt_u32 vcc, 16, v1\ns_and_saveexec_b64 s[32:33], vcc')
        e.vm(f'buffer_store_dword v7, v8, s[{WS}:{WS+3}], s31 offen')
        e.vm(f'buffer_store_dword v96, v8, s[{WS}:{WS+3}], s31 offen offset:16')
    e.label(f'{name}_end')
    e.prof_dump(2, name)
    e.label(f'{name}_exit')
    e('s_endpgm')
    return kernel_header(name) + e.text(verbose=True) + kernel_desc(name, 256)

if __name__ == '__main__':
    t = gen_k3()
    open('k3.s', 'w').write('; @launch kernel=k3_kernel grid=(240,1,1) block=(384,1,1) lds=74240\n.amdgcn_target "amdgcn-amd-amdhsa--gfx950"\n' + t)
```

```python
from asmlib import *
from layout import *

def srd_ws(e, sreg, sptr, size):
    e(f's_mov_b32 s{sreg}, s{sptr}')
    e(f's_and_b32 s{sreg+1}, s{sptr+1}, 0xffff')
    e(f's_mov_b32 s{sreg+2}, {size}')
    e(f's_mov_b32 s{sreg+3}, 0x20000')

K2C = -2.0*0.7978845608028654*1.4426950408889634
K1C = K2C*0.044715

def gen_k4(name='k4_kernel', rate=(2,1), LA=8, stamp=False, awg=1, bwg=1, rate2=None):
    e = Emit()
    nst = [0]
    def STAMP():
        if stamp:
            k = nst[0]; nst[0] += 1
            e(f's_memtime s[{52+2*k}:{53+2*k}]'); e.wait_all_ds()
    WS = 8
    vL16 = 1; vTmp = 2; vHB0 = 3; vHB1 = 4; vG0 = 5; vG1 = 6; vGR0 = 7; vGR1 = 8; vK1 = 9; vBCo = 10
    RINV = 12; C0 = 16
    RING = 20
    BX = 92
    HACC = 124
    BCB = 204
    Z = 220; T = 224
    PK = 228
    ST = 232
    def ring(n): b = RING + 4*(n % 18); return f'v[{b}:{b+3}]'
    def bc(q, mt):
        if q < 16: b = (q*4+mt)*4; return f'a[{b}:{b+3}]'
        b = BX + ((q-16)*4+mt)*4; return f'v[{b}:{b+3}]'
    def gb(q2, mt): b = BX + ((q2 & 1)*4+mt)*4; return f'v[{b}:{b+3}]'
    def hacc(p, mt): return HACC + (p % 5)*16 + mt*4
    def oacc(dt, mt): return (dt*4+mt)*4
    LDS_G = 73728
    e('s_cmp_ge_u32 s2, 256')
    e(f's_cbranch_scc1 {name}_exit')
    e.prof_init()
    e('s_load_dwordx2 s[4:5], s[0:1], 80')
    if stamp: e('s_memtime s[40:41]')
    e('v_lshrrev_b32 v2, 6, v0')
    e('v_and_b32 v11, 63, v0')
    e('v_readfirstlane_b32 s12, v2')
    e(f'v_lshlrev_b32 v{vL16}, 4, v11')
    e('s_lshr_b32 s13, s2, 3')
    e('s_and_b32 s14, s2, 7')
    e(f's_mul_i32 s15, s13, 73728')
    e(f's_mul_i32 s16, s12, 18432')
    e(f's_add_u32 s17, s15, s16')
    e(f's_add_u32 s17, s17, {OFF_H}')
    e(f's_mov_b32 s18, s16')
    e('s_lshl_b32 s19, s14, 2\ns_add_u32 s19, s19, s12')
    e(f's_mul_i32 s20, s19, {162*1024}')
    e(f's_add_u32 s21, s20, {OFF_W1P}')
    e(f's_add_u32 s22, s20, {OFF_W2P}')
    e(f's_mul_i32 s23, s19, {9*128}\ns_add_u32 s23, s23, {OFF_BC}')
    e(f'v_lshrrev_b32 v{vBCo}, 4, v11\nv_lshlrev_b32 v{vBCo}, 5, v{vBCo}')
    e(f's_mul_i32 s24, s13, {6*512}\ns_add_u32 s24, s24, {OFF_ST}')
    e(f'v_lshlrev_b32 v{vTmp}, 3, v11')
    e(f's_mul_i32 s25, s14, 2359296\ns_add_u32 s25, s25, s15\ns_add_u32 s25, s25, s16\ns_add_u32 s25, s25, {OFF_P}')
    e(f'v_mov_b32 v{vHB0}, v{vL16}\nv_add_u32 v{vHB1}, 36864, v{vL16}')
    e('s_lshr_b32 s26, s12, 1\ns_lshl_b32 s26, s26, 12\ns_and_b32 s27, s12, 1\ns_lshl_b32 s27, s27, 3\ns_add_u32 s26, s26, s27')
    e(f's_add_u32 s26, s26, {LDS_G}')
    e(f'v_add_u32 v{vG0}, s26, v{vL16}\nv_add_u32 v{vG1}, 32768, v{vG0}')
    e(f'v_add_u32 v{vGR0}, {LDS_G}, v{vL16}\nv_add_u32 v{vGR1}, 36864, v{vGR0}')
    e(f'v_mov_b32 v{vK1}, {lit(K1C)}')
    e('s_waitcnt lgkmcnt(0)')
    e.stamp(9)
    srd_ws(e, WS, 4, WS_END)
    def aload(n):
        if n < 162: sreg, k = 21, n
        else: sreg, k = 22, n-162
        e.vm(f'buffer_load_dwordx4 {ring(n)}, v{vL16}, s[{WS}:{WS+3}], s{sreg} offen offset:{(k % 4)*1024}', ('A', n))
        if k % 4 == 3: e(f's_add_u32 s{sreg}, s{sreg}, 4096')
    for q in range(18):
        if q % 4 == 0:
            e(f's_add_u32 m0, s18, {q*1024}')
            if q: e(f's_add_u32 s17, s17, 4096')
            else: e('s_nop 0')
        e.vm(f'buffer_load_dwordx4 v{vL16}, s[{WS}:{WS+3}], s17 offen offset:{(q % 4)*1024} lds', ('H', q))
        aload(q)
    for cb in range(6):
        e.vm(f'buffer_load_dwordx2 v[{ST+2*cb}:{ST+2*cb+1}], v{vTmp}, s[{WS}:{WS+3}], s24 offen offset:{cb*512}', ('ST', cb))
    def bcload(p):
        b = BCB + (p & 1)*8
        e.vm(f'buffer_load_dwordx4 v[{b}:{b+3}], v{vBCo}, s[{WS}:{WS+3}], s23 offen offset:{p*128}', ('BC', p, 0))
        e.vm(f'buffer_load_dwordx4 v[{b+4}:{b+7}], v{vBCo}, s[{WS}:{WS+3}], s23 offen offset:{p*128+16}', ('BC', p))
    bcload(0); bcload(1)

    fq = []
    def F(min_slot, s): fq.append((min_slot, s))
    st = []
    def S(s): F(8, s)
    F(8, lambda: e.wait_vm(('ST', 5)))
    for cb in range(1, 6):
        S(f'v_add_f32 v{ST}, v{ST}, v{ST+2*cb}'); S(f'v_add_f32 v{ST+1}, v{ST+1}, v{ST+2*cb+1}')
    S(f'v_mul_f32 v{ST}, {lit(1.0/576)}, v{ST}')
    S(f'v_mul_f32 v{ST+1}, {lit(1.0/576)}, v{ST+1}')
    S(f'v_fma_f32 v{ST+1}, -v{ST}, v{ST}, v{ST+1}')
    S(f'v_max_f32 v{ST+1}, 0, v{ST+1}')
    S(f'v_cvt_pk_bf16_f32 v{ST+2}, v{ST}, v{ST+1}')
    S(f'v_lshlrev_b32 v{ST+3}, 16, v{ST+2}')
    S(f'v_and_b32 v{ST+4}, 0xffff0000, v{ST+2}')
    S(f'v_add_f32 v{ST+4}, {lit(1e-5)}, v{ST+4}')
    S(f'v_cvt_pk_bf16_f32 v{ST+4}, v{ST+4}, v{ST+4}')
    S(f'v_and_b32 v{ST+4}, 0xffff0000, v{ST+4}')
    S(f'v_sqrt_f32 v{ST+4}, v{ST+4}')
    S(f'v_cvt_pk_bf16_f32 v{ST+4}, v{ST+4}, v{ST+4}')
    S(f'v_and_b32 v{ST+4}, 0xffff0000, v{ST+4}')
    S(f'v_rcp_f32 v{ST+4}, v{ST+4}')
    S(f'v_mul_f32 v{ST+3}, v{ST+3}, v{ST+4}')
    S(f'v_sub_f32 v{ST+3}, 0, v{ST+3}')
    S(f'v_and_b32 v{ST+5}, 15, v0')
    S(f'v_lshlrev_b32 v{ST+5}, 2, v{ST+5}')
    for mt in range(4):
        S(f'v_add_u32 v{ST+6+mt}, {mt*64}, v{ST+5}')
    for mt in range(4):
        F(8, (lambda mt=mt: e.ds(f'ds_bpermute_b32 v{RINV+mt}, v{ST+6+mt}, v{ST+4}', ('RP', mt))))
        F(8, (lambda mt=mt: e.ds(f'ds_bpermute_b32 v{C0+mt}, v{ST+6+mt}, v{ST+3}', ('CP', mt))))
    gw_slot = {}
    gend = {}
    cur = {'slot': 0}
    def gelu_items(p):
        ms = 72*(p+1) + 1
        bcb = BCB + (p & 1)*8
        if p == 0: F(ms, lambda: e.wait_ds(('CP', 3)))
        F(ms, lambda p=p: e.wait_vm(('BC', p)))
        for mt in range(4):
            a = hacc(p, mt)
            for r in range(4): F(ms, f'v_fma_f32 v{T+r}, v{C0+mt}, v{bcb+4+r}, v{bcb+r}')
            for r in range(4): F(ms, f'v_fma_f32 v{Z+r}, v{a+r}, v{RINV+mt}, v{T+r}')
            for r in range(4): F(ms, f'v_mul_f32 v{T+r}, v{Z+r}, v{Z+r}')
            for r in range(4): F(ms, f'v_fmaak_f32 v{T+r}, v{T+r}, v{vK1}, {lit(K2C)}')
            for r in range(4): F(ms, f'v_mul_f32 v{T+r}, v{Z+r}, v{T+r}')
            for r in range(4): F(ms, f'v_exp_f32 v{T+r}, v{T+r}')
            for r in range(4): F(ms, f'v_add_f32 v{T+r}, 1.0, v{T+r}')
            for r in range(4): F(ms, f'v_rcp_f32 v{T+r}, v{T+r}')
            for r in range(4): F(ms, f'v_mul_f32 v{Z+r}, v{Z+r}, v{T+r}')
            pk = PK + (mt & 1)*2
            F(ms, f'v_cvt_pk_bf16_f32 v{pk}, v{Z}, v{Z+1}')
            F(ms, f'v_cvt_pk_bf16_f32 v{pk+1}, v{Z+2}, v{Z+3}')
            base = vG0 if p < 4 else vG1
            off = (p % 4)*8192 + mt*1024 if p < 8 else 32768 + mt*1024
            if p == 8: base, off = vG1, 32768 + mt*1024
            def wr(base=base, off=off, pk=pk, p=p, mt=mt):
                e.ds(f'ds_write_b64 v{base}, v[{pk}:{pk+1}] offset:{off}', ('GW', p, mt))
                if mt == 3: gw_slot[p] = cur['slot']
            F(ms, wr)
        if p + 2 < 9: F(ms, lambda p=p: bcload(p+2))
        def done(p=p): gend[p] = cur['slot']
        F(ms, done)
    for p in range(9): gelu_items(p)

    def drain(n, slot):
        k = 0
        while fq and k < n and fq[0][0] <= slot:
            _, it = fq.pop(0)
            if callable(it):
                before = len(e.L); it()
                if len(e.L) > before: k += 1
            else:
                e(it); k += 1
    last_barrier = {'slot': -1}
    def barrier(slot):
        e.wait_all_ds(); e('s_barrier'); last_barrier['slot'] = slot

    def bread(q, mt):
        idx = mt*18 + q
        base, off = (vHB0, idx*1024) if idx < 36 else (vHB1, (idx-36)*1024)
        e.ds(f'ds_read_b128 {bc(q, mt)}, v{base} offset:{off}', ('B', q, mt))
    def gread(q2, mt):
        idx = q2*4 + mt
        base, off = (vGR0, idx*1024) if idx < 36 else (vGR1, (idx-36)*1024)
        e.ds(f'ds_read_b128 {gb(q2, mt)}, v{base} offset:{off}', ('G', q2, mt))
    STAMP(); e.stamp(1)
    e.wait_vm(('H', 5)); e('s_barrier')
    STAMP(); e.stamp(2)
    nb = 0
    for t in range(LA):
        bread(t//4, t % 4)
    nb = LA
    slot = 0
    for p in range(9):
        if p == 1: STAMP(); e.stamp(3)
        for q in range(18):
            n = p*18 + q
            for mt in range(4):
                cur['slot'] = slot
                if mt == 0 and n % awg == 0: e.wait_vm(('A', min(n + awg - 1, 323)))
                if p == 0 and (mt % bwg == 0): e.wait_ds(('B', q, mt + bwg - 1))
                a = hacc(p, mt)
                c = '0' if q == 0 else f'v[{a}:{a+3}]'
                if q == 0 and p >= 5:
                    assert gend.get(p-5, 10**9) <= slot, (p, gend, slot)
                e(f'v_mfma_f32_16x16x32_bf16 v[{a}:{a+3}], {ring(n)}, {bc(q, mt)}, {c}')
                if mt == 3 and n + 18 < 324: aload(n + 18)
                if p == 0 and nb < 72:
                    qq = nb//4
                    if nb % 4 == 0 and qq in (6, 12):
                        e.wait_vm(('H', qq+5)); e('s_barrier')
                    bread(qq, nb % 4); nb += 1
                if p == 8 and q == 17 and mt == 0:
                    pass
                quota = rate[slot % len(rate)]
                drain(quota, slot)
                slot += 1
                if p == 8 and q == 16 and mt == 3:
                    cur['slot'] = slot
                    assert gw_slot.get(0, 10**9) < slot
                    barrier(slot)
                    for m2 in range(4): gread(0, m2)
    STAMP(); e.stamp(4)
    for q2 in range(18):
        for dt in range(9):
            n = 162 + q2*9 + dt
            for mt in range(4):
                cur['slot'] = slot
                if mt == 0 and n % awg == 0: e.wait_vm(('A', min(n + awg - 1, 323)))
                if dt == 0 and mt == 0: e.wait_ds(('G', q2, 3))
                a = oacc(dt, mt)
                c = '0' if q2 == 0 else f'a[{a}:{a+3}]'
                e(f'v_mfma_f32_16x16x32_bf16 a[{a}:{a+3}], {ring(n)}, {gb(q2, mt)}, {c}')
                if mt == 3 and n + 18 < 324: aload(n + 18)
                if q2 + 1 < 18 and mt == 1 and 1 <= dt <= 4:
                    if dt == 1:
                        pn = (q2+1) >> 1
                        assert pn in gw_slot and gw_slot[pn] < slot, (q2, pn, gw_slot, slot)
                        if last_barrier['slot'] <= gw_slot[pn]: barrier(slot)
                    gread(q2+1, dt-1)
                r2 = rate2 or rate
                quota = r2[slot % len(r2)]
                drain(quota, slot)
                slot += 1
                if q2 == 17 and mt == 3:
                    pass
    assert not fq or all(False for _ in fq), f'fillers left: {len(fq)}'
    STAMP(); e.stamp(5)
    for dt in range(9):
        for a2 in range(2):
            tb = Z if a2 == 0 else HACC
            tb = HACC + (dt*2 + a2) % 8 * 8
            for t in range(2):
                acc = oacc(dt, 2*a2 + t)
                for r in range(4): e(f'v_accvgpr_read_b32 v{tb+4*t+r}, a{acc+r}')
            pk = RING + ((dt*2+a2) % 16)*4
            e(f'v_cvt_pk_bf16_f32 v{pk}, v{tb}, v{tb+1}')
            e(f'v_cvt_pk_bf16_f32 v{pk+1}, v{tb+2}, v{tb+3}')
            e(f'v_cvt_pk_bf16_f32 v{pk+2}, v{tb+4}, v{tb+5}')
            e(f'v_cvt_pk_bf16_f32 v{pk+3}, v{tb+6}, v{tb+7}')
            k = dt*2 + a2
            e.vm(f'buffer_store_dwordx4 v[{pk}:{pk+3}], v{vL16}, s[{WS}:{WS+3}], s25 offen offset:{(k % 4)*1024}')
            if k % 4 == 3: e('s_add_u32 s25, s25, 4096')
    if stamp:
        STAMP()
        e('s_waitcnt vmcnt(0)')
        STAMP()
        e('s_memtime s[42:43]\ns_waitcnt lgkmcnt(0)\ns_sub_u32 s42, s42, s40')
        e('s_load_dwordx2 s[44:45], s[0:1], 72\ns_waitcnt lgkmcnt(0)')
        e('s_mov_b32 s48, s44\ns_and_b32 s49, s45, 0xffff\ns_mov_b32 s50, 256\ns_mov_b32 s51, 0x20000')
        e('s_cmp_lg_u32 s2, 0\ns_cbranch_scc1 ' + name + '_end')
        e('v_mov_b32 v2, s42\nv_mov_b32 v3, 0\nbuffer_store_dword v2, v3, s[48:51], 0 offen')
        for k in range(nst[0]):
            e(f's_sub_u32 s42, s{52+2*k}, s40\nv_mov_b32 v2, s42\nbuffer_store_dword v2, v3, s[48:51], 0 offen offset:{4+4*k}')
    e.stamp(6)
    e.label(f'{name}_end')
    e.prof_dump(3, name)
    e.label(f'{name}_exit')
    e('s_endpgm')
    return kernel_header(name) + e.text(verbose=True) + kernel_desc(name, 256, 256), gend

if __name__ == '__main__':
    import sys
    t, gend = gen_k4()
    print(gend)
    open('k4.s', 'w').write('; @launch kernel=k4_kernel grid=(256,1,1) block=(256,1,1) lds=147456\n.amdgcn_target "amdgcn-amd-amdhsa--gfx950"\n' + t)
```

```python
from asmlib import *
from layout import *
from k4 import srd_ws

def gen_k5(name='k5_kernel'):
    e = Emit()
    WS = 8; OUT = 12; B2 = 16
    e('s_cmp_ge_u32 s2, 288')
    e(f's_cbranch_scc1 {name}_exit')
    e.prof_init()
    e('s_load_dwordx2 s[4:5], s[0:1], 80')
    e('s_load_dwordx2 s[6:7], s[0:1], 64')
    e('s_load_dwordx2 s[20:21], s[0:1], 56')
    e('v_lshrrev_b32 v2, 6, v0')
    e('v_and_b32 v1, 63, v0')
    e('v_readfirstlane_b32 s22, v2')
    e('v_lshlrev_b32 v3, 4, v1')
    e('s_lshl_b32 s23, s2, 2\ns_add_u32 s23, s23, s22')
    e(f's_mul_hi_u32 s24, s23, {(2**32 + 35)//36}')
    e('s_mul_i32 s25, s24, 36\ns_sub_u32 s25, s23, s25')
    e('s_cmp_ge_u32 s25, 18\ns_cselect_b32 s26, 1, 0')
    e('s_mul_i32 s27, s26, 18\ns_sub_u32 s27, s25, s27')
    e('s_mul_i32 s28, s24, 73728')
    for t in range(2):
        e(f's_lshl_b32 s29, s27, 1\ns_add_u32 s29, s29, {t}')
        e(f's_mul_hi_u32 s30, s29, {(2**32 + 8)//9}')
        e('s_mul_i32 s31, s30, 9\ns_sub_u32 s31, s29, s31')
        e('s_mul_i32 s30, s30, 18432\ns_lshl_b32 s31, s31, 1\ns_add_u32 s31, s31, s26\ns_lshl_b32 s31, s31, 10')
        e(f's_add_u32 s{32+t}, s30, s31\ns_add_u32 s{32+t}, s{32+t}, s28\ns_add_u32 s{32+t}, s{32+t}, {OFF_P}')
    e(f's_mul_i32 s30, s26, {2*18*1024}\ns_lshl_b32 s31, s27, 10\ns_add_u32 s34, s30, s31\ns_add_u32 s34, s34, s28\ns_add_u32 s34, s34, {OFF_H}')
    e(f's_add_u32 s35, s34, {18*1024}')
    e('v_lshrrev_b32 v4, 4, v1')
    e('v_lshlrev_b32 v5, 3, v4')
    e('s_lshl_b32 s36, s27, 6')
    e('s_waitcnt lgkmcnt(0)')
    e.stamp(9)
    srd_ws(e, WS, 4, WS_END)
    srd_ws(e, OUT, 6, S*D*2)
    srd_ws(e, B2, 20, D*2)
    PB = 16
    for j in range(8):
        for t in range(2):
            b = PB + (j*2+t)*4
            e.vm(f'buffer_load_dwordx4 v[{b}:{b+3}], v3, s[{WS}:{WS+3}], s{32+t} offen', ('P', j, t))
        if j < 7: e('s_add_u32 s32, s32, 2359296\ns_add_u32 s33, s33, 2359296')
    HB = 80
    e.vm(f'buffer_load_dwordx4 v[{HB}:{HB+3}], v3, s[{WS}:{WS+3}], s34 offen', 'H0')
    e.vm(f'buffer_load_dwordx4 v[{HB+4}:{HB+7}], v3, s[{WS}:{WS+3}], s35 offen', 'H1')
    BB = 88
    e.vm(f'buffer_load_dwordx2 v[{BB}:{BB+1}], v5, s[{B2}:{B2+3}], s36 offen', 'B0')
    e.vm(f'buffer_load_dwordx2 v[{BB+2}:{BB+3}], v5, s[{B2}:{B2+3}], s36 offen offset:32', 'B1')
    e.stamp(1)
    e('v_and_b32 v6, 15, v1')
    e('v_mul_u32_u24 v6, 73728, v6')
    e('v_and_b32 v7, 1, v4\nv_lshlrev_b32 v7, 5, v7\nv_lshrrev_b32 v8, 1, v4\nv_lshlrev_b32 v8, 4, v8\nv_add3_u32 v6, v6, v7, v8')
    e('s_lshl_b32 s37, s24, 1\ns_add_u32 s37, s37, s26\ns_mul_i32 s37, s37, 1152\ns_add_u32 s37, s37, s36')
    e(f's_add_u32 s38, s37, {16*64*1152}')
    e('s_mov_b32 s40, 0x00003f80\ns_mov_b32 s41, 0x3f800000')
    AC = 96
    for j in range(8):
        e.wait_vm(('P', j, 1))
        for t in range(2):
            b = PB + (j*2+t)*4
            for k in range(4):
                a0 = AC + t*8 + (k >> 1)*4 + (k & 1)*2
                c0 = '0' if j == 0 else f'v{a0}'; c1 = '0' if j == 0 else f'v{a0+1}'
                e(f'v_dot2_f32_bf16 v{a0}, v{b+k}, s40, {c0}')
                e(f'v_dot2_f32_bf16 v{a0+1}, v{b+k}, s41, {c1}')
    e.stamp(2)
    e.wait_vm('B1')
    TM = 16
    OB = 112
    for m in range(2):
        for t in range(2):
            for k in range(2):
                a0 = AC + t*8 + m*4 + 2*k
                e(f'v_cvt_pk_bf16_f32 v{TM}, v{a0}, v{a0+1}')
                e(f'v_lshlrev_b32 v{TM+1}, 16, v{TM}\nv_and_b32 v{TM+2}, 0xffff0000, v{TM}')
                bb = BB + 2*t + k
                e(f'v_lshlrev_b32 v{TM+3}, 16, v{bb}\nv_and_b32 v{TM+4}, 0xffff0000, v{bb}')
                e(f'v_add_f32 v{TM+1}, v{TM+1}, v{TM+3}\nv_add_f32 v{TM+2}, v{TM+2}, v{TM+4}')
                e(f'v_cvt_pk_bf16_f32 v{TM}, v{TM+1}, v{TM+2}')
                e(f'v_lshlrev_b32 v{TM+1}, 16, v{TM}\nv_and_b32 v{TM+2}, 0xffff0000, v{TM}')
                hb = HB + 4*m + 2*t + k
                e(f'v_lshlrev_b32 v{TM+3}, 16, v{hb}\nv_and_b32 v{TM+4}, 0xffff0000, v{hb}')
                e(f'v_add_f32 v{TM+1}, v{TM+1}, v{TM+3}\nv_add_f32 v{TM+2}, v{TM+2}, v{TM+4}')
                e(f'v_cvt_pk_bf16_f32 v{OB+4*m+2*t+k}, v{TM+1}, v{TM+2}')
        o = OB + 4*m
        e(f'v_permlane16_swap_b32 v{o}, v{o+2}')
        e(f'v_permlane16_swap_b32 v{o+1}, v{o+3}')
        e.vm(f'buffer_store_dwordx4 v[{o}:{o+3}], v6, s[{OUT}:{OUT+3}], s{37+m} offen')
    e.stamp(3)
    e.label(f'{name}_end')
    e.prof_dump(4, name)
    e.label(f'{name}_exit')
    e('s_endpgm')
    return kernel_header(name) + e.text(verbose=True) + kernel_desc(name, 128)

if __name__ == '__main__':
    t = gen_k5()
    open('k5.s', 'w').write('; @launch kernel=k5_kernel grid=(288,1,1) block=(256,1,1) lds=0\n.amdgcn_target "amdgcn-amd-amdhsa--gfx950"\n' + t)
```

```python
import asmlib, build, re
from asmlib import *
def make():
    t = build.build(dict(awg=3, bwg=4, LA=12))
    out = []
    kidx = {'k1_kernel': 0, 'k2_kernel': 1, 'k3_kernel': 2, 'k4_kernel': 3, 'k5_kernel': 4}
    lines = t.split('\n')
    cur = None
    for i, l in enumerate(lines):
        m = re.fullmatch(r'(k\d_kernel):', l)
        if m:
            cur = m.group(1); out.append(l); out.append('s_memrealtime s[88:89]'); continue
        if cur and l == f'{cur}_exit:':
            k = kidx[cur]
            out.append('s_waitcnt vmcnt(0)')
            out.append('s_memrealtime s[90:91]')
            out.append('s_load_dwordx2 s[84:85], s[0:1], 72')
            out.append('s_waitcnt lgkmcnt(0)')
            out.append(f's_sub_u32 s84, s84, {k*512}')
            out.append('s_subb_u32 s85, s85, 0')
            out.append('s_and_b32 s85, s85, 0xffff\ns_mov_b32 s86, 256\ns_mov_b32 s87, 0x20000')
            out.append('s_mov_b64 exec, 1')
            out.append(f'v_mov_b32 v1, s90\nv_mov_b32 v2, {8*k+4}\nbuffer_atomic_umax v1, v2, s[84:87], 0 offen')
            out.append(f'v_not_b32 v1, s88\nv_mov_b32 v2, {8*k}\nbuffer_atomic_umax v1, v2, s[84:87], 0 offen')
            out.append(l); continue
        out.append(l)
    return '\n'.join(out)
if __name__ == '__main__':
    open('hprof.s', 'w').write(make())
```

```python
import asmlib, build, re
from asmlib import *
def make():
    t = build.build(dict(awg=3, bwg=4, LA=12))
    out = []
    kidx = {'k1_kernel': 0, 'k2_kernel': 1, 'k3_kernel': 2, 'k4_kernel': 3, 'k5_kernel': 4}
    lines = t.split('\n')
    cur = None
    for i, l in enumerate(lines):
        m = re.fullmatch(r'(k\d_kernel):', l)
        if m:
            cur = m.group(1); out.append(l); out.append('s_memrealtime s[88:89]'); continue
        if cur and l == f'{cur}_exit:':
            k = kidx[cur]
            out.append('s_waitcnt vmcnt(0)')
            out.append('s_memrealtime s[90:91]')
            out.append('s_load_dwordx2 s[84:85], s[0:1], 72')
            out.append('s_waitcnt lgkmcnt(0)')
            out.append(f's_add_u32 s84, s84, {(4-k)*512}')
            out.append('s_addc_u32 s85, s85, 0')
            out.append('v_readfirstlane_b32 s83, v0\ns_nop 3\ns_lshr_b32 s83, s83, 6\ns_cmp_lg_u32 s83, 0')
            out.append(f's_cbranch_scc1 {cur}_exit')
            out.append('s_and_b32 s85, s85, 0xffff\ns_mov_b32 s86, 256\ns_mov_b32 s87, 0x20000')
            out.append('s_mov_b64 exec, 1')
            out.append(f'v_mov_b32 v1, s90\nv_mov_b32 v2, {8*k+4}\nbuffer_atomic_umax v1, v2, s[84:87], 0 offen')
            out.append(f'v_not_b32 v1, s88\nv_mov_b32 v2, {8*k}\nbuffer_atomic_umax v1, v2, s[84:87], 0 offen')
            out.append(l); continue
        out.append(l)
    return '\n'.join(out)
if __name__ == '__main__':
    open('hprof.s', 'w').write(make())
```

```python
from asmlib import *
def rot(e, D, S, R, T):
    e(f'v_pk_mul_f32 v[{T}:{T+1}], v[{S}:{S+1}], v[{R}:{R+1}] op_sel:[0,0] op_sel_hi:[1,0]')
    e(f'v_pk_fma_f32 v[{D}:{D+1}], v[{S}:{S+1}], v[{R}:{R+1}], v[{T}:{T+1}] op_sel:[1,1,0] op_sel_hi:[0,1,1] neg_lo:[1,0,0]')
def cheb(e, D, S1, TC, S0):
    e(f'v_pk_fma_f32 v[{D}:{D+1}], v[{S1}:{S1+1}], v[{TC}:{TC+1}], v[{S0}:{S0+1}] op_sel:[0,0,0] op_sel_hi:[1,0,1] neg_lo:[0,0,1] neg_hi:[0,0,1]')
def cossin(e, D, A):
    e(f'v_cos_f32 v{D}, v{A}\nv_sin_f32 v{D+1}, v{A}')
```

```python
from asmlib import *
from layout import *
from k4 import srd_ws
from k3 import stats_tail
from gen_common import *

LDS_FL = 73728; LDS_STL = 90112; K1_LDS = 91136

def side_job(e, name, NMAIN, WS, WRS, WIS):
    e.label(f'{name}_side')
    e.vq = []; e.lq = []
    e(f's_sub_u32 s23, s2, {NMAIN}')
    e('s_waitcnt lgkmcnt(0)')
    srd_ws(e, WS, 4, WS_END)
    srd_ws(e, WRS, 20, S*289*2)
    srd_ws(e, WIS, 42, S*289*2)
    e('s_mul_i32 s24, s23, 18496')
    for arr, srd in ((0, WRS), (1, WIS)):
        for t in range(5):
            if t == 4: e(f's_cmp_ge_u32 s22, 3\ns_cbranch_scc1 {name}_skip{arr}')
            e(f's_lshl_b32 s25, s22, 10\ns_add_u32 s25, s25, {t*4*1024}')
            e('s_add_u32 s26, s25, s24')
            e(f's_add_u32 m0, s25, {arr*19456}\ns_nop 0')
            e.vm(f'buffer_load_dwordx4 v5, s[{srd}:{srd+3}], s26 offen lds', 'D')
            if t == 4: e.label(f'{name}_skip{arr}')
    e(f's_cmp_lg_u32 s22, 3\ns_cbranch_scc1 {name}_nopq')
    e('v_cmp_gt_u32 vcc, 32, v1\ns_and_saveexec_b64 s[30:31], vcc')
    e('s_lshl_b32 s27, s23, 5\nv_add_u32 v6, s27, v1')
    e('v_sub_u32 v7, 0, v6\nv_and_b32 v7, 2047, v7')
    e('v_mul_u32_u24 v8, 578, v6\nv_mul_u32_u24 v9, 578, v7')
    k = 16
    for vo in (8, 9):
        for col in (0, 576):
            e.vm(f'buffer_load_ushort v{k}, v{vo}, s[{WRS}:{WRS+3}], 0 offen offset:{col}', 'PQ'); k += 1
            e.vm(f'buffer_load_ushort v{k}, v{vo}, s[{WIS}:{WIS+3}], 0 offen offset:{col}', 'PQ'); k += 1
    e.wait_vm('PQ')
    for k in range(16, 24): e(f'v_lshlrev_b32 v{k}, 16, v{k}')
    e('v_add_f32 v24, v16, v20\nv_sub_f32 v25, v17, v21\nv_add_f32 v26, v18, v22\nv_sub_f32 v27, v19, v23')
    e('v_add_f32 v28, v24, v26\nv_add_f32 v29, v25, v27\nv_sub_f32 v30, v24, v26\nv_sub_f32 v31, v25, v27')
    for k in range(28, 32): e(f'v_mul_f32 v{k}, {lit(0.25)}, v{k}')
    e('v_cvt_pk_bf16_f32 v32, v28, v29\nv_cvt_pk_bf16_f32 v33, v30, v31')
    e('v_lshlrev_b32 v10, 2, v6')
    e(f's_mov_b32 s28, {OFF_WT}\ns_mov_b32 s29, {OFF_QT}')
    e.vm(f'buffer_store_dword v32, v10, s[{WS}:{WS+3}], s28 offen')
    e.vm(f'buffer_store_dword v33, v10, s[{WS}:{WS+3}], s29 offen')
    e('s_mov_b64 exec, s[30:31]')
    e.label(f'{name}_nopq')
    e('s_waitcnt vmcnt(0)\ns_barrier'); e.vq = []
    e('v_and_b32 v6, 31, v1\nv_lshrrev_b32 v7, 5, v1')
    e('s_lshl_b32 s27, s22, 1\nv_add_u32 v8, s27, v7')
    e('v_mul_u32_u24 v9, 289, v6\nv_add_u32 v9, v9, v8\nv_lshlrev_b32 v9, 1, v9')
    e('v_lshlrev_b32 v10, 13, v7\nv_lshl_add_u32 v10, v6, 2, v10')
    e('v_cmp_eq_u32 vcc, 0, v8\nv_mov_b32 v11, 0x7fffff00\ns_nop 0\nv_cndmask_b32 v11, v10, v11, vcc')
    e(f's_lshl_b32 s28, s23, 7\ns_lshl_b32 s29, s22, 14\ns_add_u32 s28, s28, s29\ns_add_u32 s28, s28, {OFF_WT}')
    for m0_ in range(0, 36, 6):
        for m in range(m0_, m0_+6):
            r = 16 + (m % 6) + 12*((m0_//6) & 1)
            e.ds(f'ds_read_u16 v{r}, v9 offset:{m*16}', ('G', m))
            e.ds(f'ds_read_u16 v{r+6}, v9 offset:{19456 + m*16}', ('G', m))
        for m in range(m0_, m0_+6):
            r = 16 + (m % 6) + 12*((m0_//6) & 1)
            e.wait_ds(('G', m))
            e(f'v_lshl_or_b32 v{r}, v{r+6}, 16, v{r}')
            e(f's_add_u32 s30, s28, {m*8*8192}')
            e.vm(f'buffer_store_dword v{r}, v{11 if m == 0 else 10}, s[{WS}:{WS+3}], s30 offen')

def gen_k1(name='k1_kernel', kidx=0):
    e = Emit()
    WS = 8; XS = 12; WRS = 16; WIS = 44
    NMAIN = 192; NSIDE = 64
    e(f's_cmp_ge_u32 s2, {NMAIN + NSIDE}')
    e(f's_cbranch_scc1 {name}_exit')
    e.prof_init()
    e('s_load_dwordx2 s[4:5], s[0:1], 80')
    e('s_load_dwordx2 s[6:7], s[0:1], 0')
    e('s_load_dwordx2 s[20:21], s[0:1], 8')
    e('s_load_dwordx2 s[42:43], s[0:1], 16')
    e('v_lshrrev_b32 v2, 6, v0')
    e('v_and_b32 v1, 63, v0')
    e('v_readfirstlane_b32 s22, v2')
    e('v_and_b32 v3, 15, v1')
    e('v_lshrrev_b32 v4, 4, v1')
    e('v_lshlrev_b32 v5, 4, v1')
    e(f's_cmp_ge_u32 s2, {NMAIN}')
    e(f's_cbranch_scc1 {name}_side')
    e('s_and_b32 s23, s2, 31')
    e('s_lshr_b32 s24, s2, 5')
    e('v_and_b32 v10, 7, v3\nv_xor_b32 v6, v4, v10\nv_lshlrev_b32 v6, 4, v6\nv_lshl_add_u32 v6, v10, 7, v6\nv_lshrrev_b32 v10, 3, v3\nv_lshl_add_u32 v6, v10, 10, v6')
    e('v_xor_b32 v7, 64, v6\nv_add_u32 v8, 40960, v6\nv_add_u32 v9, 40960, v7')
    def xread(dst, mt, q):
        m = q >> 1
        base = 6 + (q & 1) + (2 if m >= 5 else 0)
        off = (m - (5 if m >= 5 else 0))*8192 + mt*2048
        return f'ds_read_b128 v[{dst}:{dst+3}], v{base} offset:{off}'
    e('s_cmp_eq_u32 s22, 3')
    e(f's_cbranch_scc1 {name}_helper')
    MB = 16
    T0 = 228
    e('s_mul_i32 s31, s24, 48\ns_lshl_b32 s32, s22, 4\ns_add_u32 s31, s31, s32')
    e('v_add_u32 v11, s31, v3')
    e(f'v_cvt_f32_u32 v{T0}, v11\nv_cmp_eq_u32 s[50:51], 0, v11\nv_mov_b32 v{T0+1}, {lit(288.0)}')
    e(f's_nop 1\nv_cndmask_b32 v{T0}, v{T0}, v{T0+1}, s[50:51]')
    e(f'v_mul_f32 v{T0}, {lit(1.0/576)}, v{T0}')
    R1, R32, TC, TT = T0+2, T0+4, T0+6, T0+8
    SS = T0+10
    cossin(e, R1, T0)
    e(f'v_mul_f32 v{T0+1}, {lit(32.0)}, v{T0}\nv_fract_f32 v{T0+1}, v{T0+1}'); cossin(e, R32, T0+1)
    e(f'v_cvt_f32_u32 v{T0+1}, v4\nv_mul_f32 v{T0+1}, {lit(8.0)}, v{T0+1}\nv_mul_f32 v{T0+1}, v{T0+1}, v{T0}\nv_fract_f32 v{T0+1}, v{T0+1}'); cossin(e, SS, T0+1)
    e(f'v_add_f32 v{TC}, v{R1}, v{R1}')
    for q in range(18):
        rot(e, SS+2, SS, R1, TT)
        for j in range(2, 8): cheb(e, SS+2*j, SS+2*j-2, TC, SS+2*j-4)
        for j in range(4):
            e(f'v_cvt_pk_bf16_f32 v{MB+4*q+j}, v{SS+4*j}, v{SS+4*j+2}')
            e(f'v_cvt_pk_bf16_f32 v{MB+72+4*q+j}, -v{SS+4*j+1}, -v{SS+4*j+3}')
        if q < 17: rot(e, SS, SS, R32, TT)
    EPS = 12
    e(f'v_mov_b32 v{EPS}, 0\nv_mov_b32 v13, {lit(-0.25)}')
    for kk in (64, 128, 256):
        e(f'v_cmp_eq_u32 vcc, {kk}, v11\ns_nop 1\nv_cndmask_b32 v{EPS}, v{EPS}, v13, vcc')
    e('s_waitcnt lgkmcnt(0)')
    srd_ws(e, WS, 4, WS_END)
    e.stamp(2)
    ACC = 160
    XB = 192
    def rd(q):
        for mt in range(4):
            b = XB + ((q % 3)*4 + mt)*4
            e.ds(xread(b, mt, q), ('A', q, mt))
    for chunk in range(3):
        e('s_barrier')
        if chunk == 0: e.stamp(3)
        q0 = 6*chunk
        rd(q0); rd(q0+1)
        for q in range(q0, q0+6):
            e.wait_ds(('A', q, 3))
            for mt in range(4):
                b = XB + ((q % 3)*4 + mt)*4
                for c in range(2):
                    a = ACC + (mt*2+c)*4
                    m = MB + c*72 + 4*q
                    cc = '0' if q == 0 else f'v[{a}:{a+3}]'
                    e(f'v_mfma_f32_16x16x32_bf16 v[{a}:{a+3}], v[{b}:{b+3}], v[{m}:{m+3}], {cc}')
                if q + 2 < q0 + 6 and mt == 1: rd(q+2)
    e.stamp(4)
    e('s_barrier')
    e.stamp(5)
    FA = 16
    STT = 48
    BF = 80
    D2 = 88
    OB = 104
    e(f'v_add_u32 v14, {LDS_FL}, v5')
    e(f'v_lshlrev_b32 v15, 6, v4\nv_add_u32 v15, {LDS_STL}, v15')
    e('v_lshlrev_b32 v10, 7, v3\nv_lshl_add_u32 v10, v4, 4, v10')
    def fa(ft, p, c): return FA + ((ft*2+p)*2+c)*4
    for si in range(2):
        for k in range(8): e.ds(f'ds_read_b128 v[{FA+4*k}:{FA+4*k+3}], v14 offset:{(si*8+k)*1024}', ('F', si))
        for p in range(2):
            mt = 2*si + p
            for r in range(4): e.ds(f'ds_read_b128 v[{STT+16*p+4*r}:{STT+16*p+4*r+3}], v15 offset:{mt*256 + r*16}', ('T', si, p))
        for p in range(2):
            mt = 2*si + p
            e.wait_ds(('T', si, p))
            for r in range(4):
                m, ri, dc = STT+16*p+4*r, STT+16*p+4*r+1, STT+16*p+4*r+2
                ar, ai = ACC + (mt*2)*4 + r, ACC + (mt*2+1)*4 + r
                e(f'v_fma_f32 v{ar}, -v{m}, v{EPS}, v{ar}\nv_mul_f32 v{ar}, v{ar}, v{ri}\nv_mul_f32 v{ai}, v{ai}, v{ri}')
                e(f'v_cndmask_b32 v{ai}, v{ai}, v{ar}, s[50:51]\nv_cndmask_b32 v{ar}, v{ar}, v{dc}, s[50:51]')
                e(f'v_cvt_pk_bf16_f32 v{BF+4*p+r}, v{ar}, v{ai}')
        e.wait_ds(('F', si))
        for p in range(2):
            for ft in range(2):
                for c in range(2):
                    d = D2 + (ft*2+c)*4
                    cc = '0' if p == 0 else f'v[{d}:{d+3}]'
                    e(f'v_mfma_f32_16x16x32_bf16 v[{d}:{d+3}], v[{fa(ft,p,c)}:{fa(ft,p,c)+3}], v[{BF+4*p}:{BF+4*p+3}], {cc}')
        e(f's_lshl_b32 s33, s23, 1\ns_add_u32 s33, s33, {si}\ns_mul_i32 s37, s33, 36864\ns_lshl_b32 s38, s31, 7\ns_add_u32 s37, s37, s38\ns_add_u32 s37, s37, {OFF_T}')
        for ft in range(2):
            o = OB + 8*si + 4*ft
            for r in range(4): e(f'v_cvt_pk_bf16_f32 v{o+r}, v{D2+(ft*2)*4+r}, v{D2+(ft*2+1)*4+r}')
            e.vm(f'buffer_store_dwordx4 v[{o}:{o+3}], v10, s[{WS}:{WS+3}], s37 offen offset:{ft*64} sc1')
    e.stamp(6)
    e(f's_branch {name}_end')
    e.label(f'{name}_helper')
    e.vq = []; e.lq = []
    T0 = 228
    def gen_f1(si):
        e(f's_lshl_b32 s33, s23, 1\ns_add_u32 s33, s33, {si}')
        e(f'v_cvt_f32_u32 v{T0}, v3')
        e(f'v_cvt_f32_u32 v{T0+1}, v4\nv_cvt_f32_u32 v{T0+2}, s33')
        e(f'v_fmamk_f32 v{T0+1}, v{T0+1}, {lit(256.0)}, v{T0+2}')
        for ft in range(2):
            if ft: e(f'v_add_f32 v{T0+3}, {lit(16.0)}, v{T0}')
            else: e(f'v_mov_b32 v{T0+3}, v{T0}')
            e(f'v_mul_f32 v{T0+3}, {lit(1.0/2048)}, v{T0+3}')
            e(f'v_mul_f32 v{T0+4}, v{T0+3}, v{T0+1}')
            for p in range(2):
                fr = 16 + (p & 1)*8
                for r in range(4):
                    kk = 64*(16*p + r)
                    if kk: e(f'v_fmamk_f32 v{T0+6+r}, v{T0+3}, {lit(float(kk))}, v{T0+4}')
                    else: e(f'v_mov_b32 v{T0+6+r}, v{T0+4}')
                for r in range(4): cossin(e, T0+10+2*r, T0+6+r)
                for r in range(4):
                    c, s = T0+10+2*r, T0+11+2*r
                    e(f'v_cvt_pk_bf16_f32 v{fr+r}, v{c}, v{s}')
                    e(f'v_cvt_pk_bf16_f32 v{fr+4+r}, -v{s}, v{c}')
                e.ds(f'ds_write_b128 v14, v[{fr}:{fr+3}] offset:{si*8192 + ((ft*2+p)*2)*1024}')
                e.ds(f'ds_write_b128 v14, v[{fr+4}:{fr+7}] offset:{si*8192 + ((ft*2+p)*2+1)*1024}')
    e(f'v_add_u32 v14, {LDS_FL}, v5')
    e('v_lshrrev_b32 v10, 3, v1\nv_and_b32 v11, 7, v1\nv_xor_b32 v11, v11, v10\nv_lshlrev_b32 v11, 4, v11\nv_mul_u32_u24 v10, 73728, v10\nv_add_u32 v10, v10, v11')
    e('s_mul_i32 s27, s23, 2304')
    gen_f1(0)
    e('s_waitcnt lgkmcnt(0)'); e.lq = []
    e.stamp(9)
    srd_ws(e, XS, 6, S*D*2)
    for m in range(9):
        for rg in range(8):
            mt, h8 = rg >> 1, rg & 1
            go = (16*(mt & 1) + 8*h8)*73728 + (mt >> 1)*1152 + m*128
            e(f's_add_u32 s30, s27, {go}\ns_mov_b32 m0, {(m*8+rg)*1024}')
            e('s_nop 0')
            e.vm(f'buffer_load_dwordx4 v10, s[{XS}:{XS+3}], s30 offen lds', ('X', m))
    e.stamp(1)
    gen_f1(1)
    ON = 32
    for r in range(4): e(f'v_mov_b32 v{ON+r}, 0x3f803f80')
    D1 = 40
    DG = 56
    XB = 72
    def rdh(q):
        for mt in range(4):
            b = XB + ((q % 3)*4 + mt)*4
            e.ds(xread(b, mt, q), ('A', q, mt))
    for chunk in range(3):
        e.wait_vm(('X', 3*chunk+2))
        e.wait_all_ds()
        e('s_barrier')
        q0 = 6*chunk
        rdh(q0); rdh(q0+1)
        for q in range(q0, q0+6):
            e.wait_ds(('A', q, 3))
            for mt in range(4):
                b = XB + ((q % 3)*4 + mt)*4
                c1 = '0' if q == 0 else f'v[{D1+4*mt}:{D1+4*mt+3}]'
                c2 = '0' if q == 0 else f'v[{DG+4*mt}:{DG+4*mt+3}]'
                e(f'v_mfma_f32_16x16x32_bf16 v[{D1+4*mt}:{D1+4*mt+3}], v[{b}:{b+3}], v[{ON}:{ON+3}], {c1}')
                e(f'v_mfma_f32_16x16x32_bf16 v[{DG+4*mt}:{DG+4*mt+3}], v[{b}:{b+3}], v[{b}:{b+3}], {c2}')
                if q + 2 < q0 + 6 and mt == 1: rdh(q+2)
    e('v_and_b32 v11, 3, v3')
    for k in range(1, 4): e(f'v_cmp_eq_u32 s[{50+2*k}:{51+2*k}], {k}, v11')
    e('v_lshrrev_b32 v11, 2, v3\nv_cmp_eq_u32 s[58:59], v11, v4')
    e(f'v_lshlrev_b32 v12, 4, v3\nv_add_u32 v12, {LDS_STL}, v12')
    SM = 120
    for mt in range(4):
        s = SM + 12*mt
        e(f'v_mov_b32 v{s}, v{D1+4*mt}\nv_mov_b32 v{s+1}, v{DG+4*mt}')
        for k in range(1, 4):
            e(f'v_cndmask_b32 v{s}, v{s}, v{D1+4*mt+k}, s[{50+2*k}:{51+2*k}]')
            e(f'v_cndmask_b32 v{s+1}, v{s+1}, v{DG+4*mt+k}, s[{50+2*k}:{51+2*k}]')
        e(f'v_mov_b32 v{s+2}, v{s}')
        stats_tail(e, s, s+1, s+3, 576)
        e(f'v_fma_f32 v{s+6}, v{s+4}, {lit(-576.0)}, v{s+2}'.replace(f', {lit(-576.0)},', ', v13,'))
        e(f'v_mul_f32 v{s+6}, v{s+6}, v{s+5}')
    e('s_mov_b64 s[60:61], exec')
    e('s_mov_b64 exec, s[58:59]')
    for mt in range(4):
        s = SM + 12*mt
        e.ds(f'ds_write_b128 v12, v[{s+4}:{s+7}] offset:{mt*256}')
    e('s_mov_b64 exec, s[60:61]')
    e.wait_all_ds()
    e('s_barrier')
    e(f's_branch {name}_end')
    side_job(e, name, NMAIN, WS, WRS, WIS)
    e.label(f'{name}_end')
    e.prof_dump(kidx, name)
    e.label(f'{name}_exit')
    e('s_endpgm')
    return e

def gen_k1_full(name='k1_kernel'):
    e = gen_k1(name)
    L = []
    for l in e.L:
        L.append(l)
        if l == f'{name}_helper:': L.append(f'v_mov_b32 v13, {lit(-576.0)}')
    e.L = L
    return kernel_header(name) + e.text(verbose=True) + kernel_desc(name, 256)

if __name__ == '__main__':
    t = gen_k1_full()
    open('k1.s', 'w').write(f'; @launch kernel=k1_kernel grid=(256,1,1) block=(256,1,1) lds={K1_LDS}\n.amdgcn_target "amdgcn-amd-amdhsa--gfx950"\n' + t)
```

```python
from asmlib import *
from layout import *
SC = 'sc1'
from k4 import srd_ws

def gen_k2(name='k2_kernel', side=True):
    e = Emit()
    WS = 8; W1S = 12; W2S = 16
    NMAIN = 72; NSIDE = 144
    e(f's_cmp_ge_u32 s2, {NMAIN + (NSIDE if side else 0)}')
    e(f's_cbranch_scc1 {name}_exit')
    e.prof_init()
    e('s_load_dwordx2 s[4:5], s[0:1], 80')
    e('s_load_dwordx2 s[6:7], s[0:1], 32')
    e('s_load_dwordx2 s[20:21], s[0:1], 48')
    e('v_lshrrev_b32 v2, 6, v0')
    e('v_and_b32 v1, 63, v0')
    e('v_readfirstlane_b32 s22, v2')
    e('v_lshlrev_b32 v5, 4, v1')
    if side:
        e(f's_cmp_ge_u32 s2, {NMAIN}')
        e(f's_cbranch_scc1 {name}_side')
    e('v_and_b32 v3, 31, v1')
    e('v_lshrrev_b32 v4, 5, v1')
    e('s_lshl_b32 s23, s2, 2\ns_add_u32 s23, s23, s22')
    e(f'v_mul_u32_u24 v6, {4*36864}, v4\nv_lshl_add_u32 v6, v3, 2, v6')
    e(f's_lshl_b32 s24, s23, 7')
    e('v_lshlrev_b32 v7, 9, v4\nv_lshl_add_u32 v7, v3, 2, v7')
    e(f's_lshl_b32 s25, s23, 13\ns_add_u32 s25, s25, {OFF_WT}\ns_add_u32 s26, s25, 4096')
    e('s_waitcnt lgkmcnt(0)')
    e.stamp(9)
    srd_ws(e, WS, 4, WS_END)
    TB = 16
    WB = 48
    e(f's_add_u32 s27, s24, {OFF_T}')
    for st in range(8):
        t, g4 = st >> 2, st & 3
        for ii in range(4):
            s2 = 32*t + 8*g4 + ii
            e(f's_add_u32 s28, s27, {s2*36864}')
            e.vm(f'buffer_load_dword v{TB+st*4+ii}, v6, s[{WS}:{WS+3}], s28 offen', ('T', st))
    for m2 in range(2):
        for g4 in range(4):
            for ii in range(4):
                row = 8*g4 + ii
                e.vm(f'buffer_load_dword v{WB+(m2*4+g4)*4+ii}, v7, s[{WS}:{WS+3}], s{25+m2} offen offset:{row*128}', ('W', m2))
    e.stamp(1)
    T0 = 240
    e('s_lshr_b32 s29, s22, 1\ns_and_b32 s30, s22, 1')
    e('s_lshl_b32 s31, s29, 5')
    e(f'v_add_u32 v{T0}, s31, v3\nv_cvt_f32_u32 v{T0}, v{T0}\nv_mul_f32 v{T0}, {lit(1.0/64)}, v{T0}')
    e(f's_lshl_b32 s32, s30, 5\nv_lshl_add_u32 v{T0+1}, v4, 2, s32\nv_cvt_f32_u32 v{T0+1}, v{T0+1}')
    e(f'v_mul_f32 v{T0+1}, v{T0}, v{T0+1}')
    e(f's_lshl_b32 s33, s29, 14\ns_lshl_b32 s34, s30, 12\ns_add_u32 s33, s33, s34')
    e('v_add_u32 v8, s33, v5')
    FR = 80
    for g4 in range(4):
        fr = FR + (g4 & 1)*8
        for ii in range(4):
            kk = 8*g4 + ii
            a = T0+2
            if kk: e(f'v_fmamk_f32 v{a}, v{T0}, {lit(float(kk))}, v{T0+1}')
            else: e(f'v_mov_b32 v{a}, v{T0+1}')
            e(f'v_cos_f32 v{T0+3}, v{a}\nv_sin_f32 v{T0+4}, v{a}')
            e(f'v_cvt_pk_bf16_f32 v{fr+ii}, v{T0+3}, v{T0+4}')
            e(f'v_cvt_pk_bf16_f32 v{fr+4+ii}, -v{T0+4}, v{T0+3}')
        e.ds(f'ds_write_b128 v8, v[{fr}:{fr+3}] offset:{g4*1024}')
        e.ds(f'ds_write_b128 v8, v[{fr+4}:{fr+7}] offset:{8*1024 + g4*1024}')
    e.stamp(2)
    e.wait_all_ds(); e('s_barrier')
    e.stamp(3)
    AF = 80
    def dft(D, B, pre=None, post=None):
        seq = [(m2, c, st) for m2 in range(2) for st in range(8) for c in range(2)]
        def rd(i):
            m2, c, st = seq[i]
            b = AF + (i % 8)*4
            e.ds(f'ds_read_b128 v[{b}:{b+3}], v5 offset:{((m2*2+c)*8+st)*1024}', ('A', i))
        LA = 6
        for i in range(LA): rd(i)
        for i, (m2, c, st) in enumerate(seq):
            if pre: pre(i, m2, c, st)
            e.wait_ds(('A', i))
            b = AF + (i % 8)*4
            d = D + (m2*2+c)*16
            cc = '0' if st == 0 else f'v[{d}:{d+15}]'
            e(f'v_mfma_f32_32x32x16_bf16 v[{d}:{d+15}], v[{b}:{b+3}], v[{B+st*4}:{B+st*4+3}], {cc}')
            if i + LA < len(seq): rd(i + LA)
            if post: post(i, m2, c, st)
    Z = 112
    def pre_f(i, m2, c, st):
        if m2 == 0 and c == 0: e.wait_vm(('T', st))
    dft(Z, TB, pre=pre_f)
    e.stamp(4)
    e.wait_vm(('W', 1))
    e('s_cmp_eq_u32 s23, 0')
    e(f's_cbranch_scc1 {name}_k0')
    TM = 240
    for m2 in range(2):
        for r in range(16):
            zr = Z + (m2*2)*16 + r; zi = Z + (m2*2+1)*16 + r
            w = WB + m2*16 + r
            tm = TM + (r & 1)*4
            e(f'v_lshlrev_b32 v{tm}, 16, v{w}\nv_and_b32 v{tm+1}, 0xffff0000, v{w}')
            e(f'v_mul_f32 v{tm+2}, v{zr}, v{tm}\nv_mul_f32 v{tm+3}, v{zr}, v{tm+1}')
            e(f'v_fma_f32 v{tm+2}, -v{zi}, v{tm+1}, v{tm+2}\nv_fma_f32 v{tm+3}, v{zi}, v{tm}, v{tm+3}')
            e(f'v_cvt_pk_bf16_f32 v{TB+m2*16+r}, v{tm+2}, -v{tm+3}')
    e.label(f'{name}_wdone')
    e.stamp(5)
    D2 = 176
    dft(D2, TB)
    e.stamp(6)
    e(f's_add_u32 s27, s24, {OFF_V}')
    for m2 in range(2):
        for r in range(16):
            g4, ii = r >> 2, r & 3
            s2 = 32*m2 + 8*g4 + ii
            o = WB + m2*16 + r
            e(f'v_cvt_pk_bf16_f32 v{o}, v{D2+(m2*2)*16+r}, -v{D2+(m2*2+1)*16+r}')
            e(f's_add_u32 s28, s27, {s2*36864}')
            e.vm(f'buffer_store_dword v{o}, v6, s[{WS}:{WS+3}], s28 offen')
    e.stamp(7)
    e(f's_branch {name}_end')
    e.label(f'{name}_k0')
    e.lq = []
    QB = 80
    e(f's_mov_b32 s35, {OFF_QT}\ns_add_u32 s36, s35, 4096')
    e.vq = []
    for m2 in range(2):
        for r in range(16):
            row = 8*(r >> 2) + (r & 3)
            e.vm(f'buffer_load_dword v{QB+m2*16+r}, v7, s[{WS}:{WS+3}], s{35+m2} offen offset:{row*128}', 'Q')
    e('v_lshlrev_b32 v9, 3, v3\nv_lshl_add_u32 v9, v4, 10, v9\nv_add_u32 v10, 32768, v9')
    for m2 in range(2):
        for r in range(16):
            row = 32*m2 + 8*(r >> 2) + (r & 3)
            e(f'v_mov_b32 v{TM}, v{Z+(m2*2)*16+r}\nv_mov_b32 v{TM+1}, v{Z+(m2*2+1)*16+r}')
            e.ds(f'ds_write_b64 v10, v[{TM}:{TM+1}] offset:{row*256}')
    e.wait_all_ds()
    e.wait_vm('Q')
    for m2 in range(2):
        for r in range(16):
            row = 32*m2 + 8*(r >> 2) + (r & 3)
            zr = Z + (m2*2)*16 + r; zi = Z + (m2*2+1)*16 + r
            p = WB + m2*16 + r; q = QB + m2*16 + r
            e(f'v_add_u32 v11, {row*256}, v9\nv_sub_u32 v11, 0, v11\nv_and_b32 v11, 16383, v11\nv_add_u32 v11, 32768, v11')
            e.ds(f'ds_read_b64 v[{TM}:{TM+1}], v11', 'zm')
            e(f'v_lshlrev_b32 v{TM+2}, 16, v{p}\nv_and_b32 v{TM+3}, 0xffff0000, v{p}')
            e(f'v_lshlrev_b32 v{TM+4}, 16, v{q}\nv_and_b32 v{TM+5}, 0xffff0000, v{q}')
            e(f'v_mul_f32 v{TM+6}, v{zr}, v{TM+2}\nv_mul_f32 v{TM+7}, v{zr}, v{TM+3}')
            e(f'v_fma_f32 v{TM+6}, -v{zi}, v{TM+3}, v{TM+6}\nv_fma_f32 v{TM+7}, v{zi}, v{TM+2}, v{TM+7}')
            e.wait_ds('zm')
            e(f'v_fma_f32 v{TM+6}, v{TM}, v{TM+4}, v{TM+6}\nv_fma_f32 v{TM+6}, v{TM+1}, v{TM+5}, v{TM+6}')
            e(f'v_fma_f32 v{TM+7}, v{TM}, v{TM+5}, v{TM+7}\nv_fma_f32 v{TM+7}, -v{TM+1}, v{TM+4}, v{TM+7}')
            e(f'v_cvt_pk_bf16_f32 v{TB+m2*16+r}, v{TM+6}, -v{TM+7}')
    e('s_nop 1')
    e(f's_branch {name}_wdone')
    if side:
        e.label(f'{name}_side')
        e.vq = []; e.lq = []
        e(f's_sub_u32 s23, s2, {NMAIN}')
        e('s_and_b32 s24, s23, 7')
        e('s_lshr_b32 s25, s23, 3\ns_lshl_b32 s25, s25, 2\ns_add_u32 s25, s25, s22')
        e(f's_mul_hi_u32 s26, s25, {(2**32+17)//18}')
        e('s_mul_i32 s27, s26, 18\ns_sub_u32 s27, s25, s27')
        e('s_waitcnt lgkmcnt(0)')
        srd_ws(e, WS, 4, WS_END)
        srd_ws(e, W1S, 6, D*F*2)
        srd_ws(e, W2S, 20, D*F*2)
        e('s_mul_i32 s28, s27, 294912\ns_mul_i32 s29, s24, 1152\ns_add_u32 s28, s28, s29\ns_mul_i32 s29, s26, 288\ns_add_u32 s28, s28, s29')
        e('s_and_b32 s30, s27, 1\ns_mul_i32 s30, s30, 288\ns_lshr_b32 s31, s27, 1\ns_lshl_b32 s31, s31, 4\ns_add_u32 s30, s30, s31')
        e('s_mul_i32 s31, s24, 576\ns_add_u32 s30, s30, s31\ns_mul_i32 s30, s30, 1152')
        e('s_mul_i32 s29, s26, 9\ns_lshr_b32 s29, s29, 1\ns_lshl_b32 s29, s29, 6\ns_add_u32 s30, s30, s29')
        e('s_mul_i32 s32, s22, 19456')
        for m in range(9):
            e(f'v_add_u32 v6, {64*m}, v1')
            e(f'v_mul_u32_u24 v7, 3641, v6\nv_lshrrev_b32 v7, 16, v7')
            e('v_mul_u32_u24 v8, 18, v7\nv_sub_u32 v8, v6, v8\nv_lshlrev_b32 v8, 4, v8')
            e(f'v_mul_u32_u24 v9, 9216, v7\nv_add_u32 v{16+m}, v9, v8')
            e(f's_add_u32 m0, s32, {m*1024}')
            e('s_nop 0')
            e.vm(f'buffer_load_dwordx4 v{16+m}, s[{W1S}:{W1S+3}], s28 offen lds', 'D1')
        for m in range(10):
            e(f'v_add_u32 v6, {64*m}, v1')
            e(f'v_mul_u32_u24 v7, 3277, v6\nv_lshrrev_b32 v7, 16, v7')
            e('v_mul_u32_u24 v8, 20, v7\nv_sub_u32 v8, v6, v8\nv_lshlrev_b32 v8, 4, v8')
            e('v_cmp_le_u32 vcc, 16, v7\nv_mov_b32 v10, 128\ns_nop 0\nv_cndmask_b32 v10, 0, v10, vcc\nv_add_u32 v10, v10, v7')
            e(f'v_mul_u32_u24 v10, 1152, v10\nv_add_u32 v{32+m}, v10, v8')
            e(f's_add_u32 m0, s32, {9216 + m*1024}')
            e('s_nop 0')
            e.vm(f'buffer_load_dwordx4 v{32+m}, s[{W2S}:{W2S+3}], s30 offen lds', 'D2')
        e('v_lshrrev_b32 v6, 4, v1\nv_lshlrev_b32 v6, 3, v6\nv_bfe_u32 v7, v1, 2, 2\nv_add_u32 v6, v6, v7\nv_mul_u32_u24 v6, 288, v6')
        e('v_and_b32 v7, 3, v1\nv_lshl_add_u32 v6, v7, 3, v6\nv_add_u32 v6, s32, v6')
        e('v_lshrrev_b32 v11, 2, v1\nv_mul_u32_u24 v11, 320, v11\nv_lshl_add_u32 v11, v7, 4, v11\nv_add_u32 v11, s32, v11\nv_add_u32 v11, 9216, v11')
        e('s_and_b32 s37, s26, 1')
        e('s_lshl_b32 s38, s37, 3')
        e('s_cmp_eq_u32 s37, 0\ns_cselect_b32 s39, 8, 64')
        e('v_add_u32 v12, s39, v11\nv_add_u32 v11, s38, v11')
        e(f's_lshl_b32 s33, s24, 2\ns_add_u32 s33, s33, s26\ns_mul_i32 s33, s33, {162*1024}')
        e(f's_lshl_b32 s34, s27, 10\ns_add_u32 s34, s34, s33')
        e(f's_add_u32 s35, s34, {OFF_W2P}\ns_add_u32 s34, s34, {OFF_W1P}')
        e.stamp(1)
        for which, tag in ((0, 'D1'), (1, 'D2')):
            e.wait_vm(tag)
            e.stamp(2+which)
            for p in range(9):
                b = 48 + (which*9+p)*4
                if which == 0:
                    e.ds(f'ds_read_b64_tr_b16 v[{b}:{b+1}], v6 offset:{p*32}', ('R', which, p))
                    e.ds(f'ds_read_b64_tr_b16 v[{b+2}:{b+3}], v6 offset:{p*32 + 4*288}', ('R', which, p))
                else:
                    base = 11 if p % 2 == 0 else 12
                    off = (p >> 1)*64
                    e.ds(f'ds_read_b64_tr_b16 v[{b}:{b+1}], v{base} offset:{off}', ('R', which, p))
                    e.ds(f'ds_read_b64_tr_b16 v[{b+2}:{b+3}], v{base} offset:{off + 16*320}', ('R', which, p))
            for p in range(9):
                b = 48 + (which*9+p)*4
                e.wait_ds(('R', which, p))
                e(f's_add_u32 s36, s{34+which}, {p*18*1024}')
                e.vm(f'buffer_store_dwordx4 v[{b}:{b+3}], v5, s[{WS}:{WS+3}], s36 offen {SC}')
    e.label(f'{name}_end')
    e.prof_dump(1, name)
    e.label(f'{name}_exit')
    e('s_endpgm')
    return kernel_header(name) + e.text(verbose=True) + kernel_desc(name, 256)

if __name__ == '__main__':
    t = gen_k2()
    open('k2.s', 'w').write('; @launch kernel=k2_kernel grid=(216,1,1) block=(256,1,1) lds=73728\n.amdgcn_target "amdgcn-amd-amdhsa--gfx950"\n' + t)
```

```python
from asmlib import *
from layout import *
from k4 import srd_ws
from gen_common import *

def gen_k3(name='k3_kernel', kidx=2):
    e = Emit()
    WS = 8; XS = 12; B1S = 16
    NMAIN = 192; NSIDE = 64
    e(f's_cmp_ge_u32 s2, {NMAIN + NSIDE}')
    e(f's_cbranch_scc1 {name}_exit')
    e.prof_init()
    e('s_load_dwordx2 s[4:5], s[0:1], 80')
    e('s_load_dwordx2 s[6:7], s[0:1], 0')
    e('s_load_dwordx2 s[20:21], s[0:1], 40')
    e('v_lshrrev_b32 v2, 6, v0')
    e('v_and_b32 v1, 63, v0')
    e('v_readfirstlane_b32 s22, v2')
    e('v_and_b32 v3, 15, v1')
    e('v_lshrrev_b32 v4, 4, v1')
    e('v_lshlrev_b32 v5, 4, v1')
    e(f's_cmp_ge_u32 s2, {NMAIN}')
    e(f's_cbranch_scc1 {name}_side')
    e('s_and_b32 s23, s2, 31')
    e('s_lshr_b32 s24, s2, 5')
    e('s_lshr_b32 s25, s22, 1')
    e('s_and_b32 s26, s22, 1')
    e('s_lshl_b32 s27, s23, 1\ns_add_u32 s27, s27, s25')
    e(f's_mul_i32 s28, s27, 36864\ns_mul_i32 s29, s26, {9*2048}\ns_add_u32 s28, s28, s29\ns_add_u32 s28, s28, {OFF_V}')
    e('v_lshlrev_b32 v6, 7, v3\nv_lshl_add_u32 v6, v4, 4, v6')
    e('v_mul_u32_u24 v9, 73728, v3\nv_lshl_add_u32 v9, v4, 3, v9')
    e('s_mul_i32 s32, s24, 3\ns_add_u32 s32, s32, s22')
    e('s_lshl_b32 s33, s32, 6\ns_mul_i32 s34, s23, 2304\ns_add_u32 s33, s33, s34')
    e('v_mov_b32 v10, 0\nv_mov_b32 v11, 0\nv_lshlrev_b32 v8, 3, v1\nv_add_u32 v8, 73728, v8')
    e('s_cmp_lg_u32 s22, 3')
    e(f's_cbranch_scc1 {name}_nz')
    e('ds_write_b64 v8, v[10:11]')
    e.label(f'{name}_nz')
    GB = 96
    def gb(nt, p, c): return GB + ((nt*2+p)*2+c)*4
    T0 = 232
    e(f'v_cvt_f32_u32 v{T0}, v3')
    e(f'v_cvt_f32_u32 v{T0+1}, v4\nv_mul_f32 v{T0+1}, 4.0, v{T0+1}')
    e(f'v_cvt_f32_u32 v{T0+2}, s27')
    e('s_waitcnt lgkmcnt(0)')
    e.stamp(9)
    srd_ws(e, WS, 4, WS_END)
    srd_ws(e, XS, 6, S*D*2)
    VA = 16
    XR = 200
    e('s_cmp_eq_u32 s22, 3')
    e(f's_cbranch_scc1 {name}_nox')
    for mt in range(4):
        si, nt = mt >> 1, mt & 1
        e(f's_add_u32 s35, s33, {si*1152 + nt*16*73728}')
        e(f'buffer_load_dwordx2 v[{XR+4*mt}:{XR+4*mt+1}], v9, s[{XS}:{XS+3}], s35 offen')
        e(f'buffer_load_dwordx2 v[{XR+4*mt+2}:{XR+4*mt+3}], v9, s[{XS}:{XS+3}], s35 offen offset:32')
    e.label(f'{name}_nox')
    for kl in range(9):
        for p in range(2):
            b = VA + (kl*2+p)*4
            e.vm(f'buffer_load_dwordx4 v[{b}:{b+3}], v6, s[{WS}:{WS+3}], s28 offen offset:{(kl % 2)*2048 + p*64}', ('V', kl))
        if kl % 2 == 1: e('s_add_u32 s28, s28, 4096')
    e.stamp(1)
    for nt in range(2):
        e(f'v_fmamk_f32 v{T0+3}, v{T0}, {lit(64.0)}, v{T0+2}')
        if nt: e(f'v_add_f32 v{T0+3}, {lit(1024.0)}, v{T0+3}')
        e(f'v_mul_f32 v{T0+3}, {lit(1.0/2048)}, v{T0+3}')
        e(f'v_mul_f32 v{T0+4}, v{T0+3}, v{T0+1}')
        for p in range(2):
            for r in range(4):
                kk = 16*p + r
                if kk: e(f'v_fmamk_f32 v{T0+6+r}, v{T0+3}, {lit(float(kk))}, v{T0+4}')
                else: e(f'v_mov_b32 v{T0+6+r}, v{T0+4}')
            for r in range(4): cossin(e, T0+10+2*r, T0+6+r)
            for r in range(4):
                c, s = T0+10+2*r, T0+11+2*r
                e(f'v_cvt_pk_bf16_f32 v{gb(nt,p,0)+r}, v{c}, -v{s}')
                e(f'v_cvt_pk_bf16_f32 v{gb(nt,p,1)+r}, v{s}, v{c}')
    MA0 = 128
    e('s_cmp_eq_u32 s22, 3')
    e(f's_cbranch_scc1 {name}_nogen')
    def gen_setup(t):
        e(f's_lshl_b32 s36, s32, 5\ns_add_u32 s36, s36, {16*t}')
        e(f'v_add_u32 v{T0+6}, s36, v3\nv_cvt_f32_u32 v{T0+6}, v{T0+6}\nv_mul_f32 v{T0+6}, {lit(1.0/576)}, v{T0+6}')
        cossin(e, T0+8, T0+6)
        e(f'v_mul_f32 v{T0+7}, {lit(16.0)}, v{T0+6}\nv_fract_f32 v{T0+7}, v{T0+7}')
        cossin(e, T0+10, T0+7)
        e(f'v_mul_f32 v{T0+7}, v{T0+6}, v{T0+1}\nv_fract_f32 v{T0+7}, v{T0+7}')
        cossin(e, T0+12, T0+7)
        e(f'v_add_f32 v{T0+14}, v{T0+8}, v{T0+8}')
    R1, R16, S0, TC = T0+8, T0+10, T0+12, T0+14
    S1, S2_, S3, TT = T0+16, T0+18, T0+20, T0+22
    def gen_frag(dst, kt, acc=False):
        rot(e, S1, S0, R1, TT)
        cheb(e, S2_, S1, TC, S0)
        cheb(e, S3, S2_, TC, S1)
        for r, sreg in enumerate((S0, S1, S2_, S3)):
            if acc:
                e(f'v_cvt_pk_bf16_f32 v{TT}, v{sreg}, -v{sreg+1}\nv_accvgpr_write_b32 a{dst+r}, v{TT}')
            else:
                e(f'v_cvt_pk_bf16_f32 v{dst+r}, v{sreg}, -v{sreg+1}')
        if kt < 17: rot(e, S0, S0, R16, TT)
    def k0_patch(reg, t, acc=False):
        e(f'v_and_b32 v{TT}, 1, v3\nv_lshlrev_b32 v{TT}, 31, v{TT}\nv_or_b32 v{TT}, 0x3f003f00, v{TT}')
        e(f'v_cmp_eq_u32 vcc, 0, v4')
        if acc:
            e(f'v_accvgpr_read_b32 v{TT+1}, a{reg}\ns_nop 1\nv_cndmask_b32 v{TT+1}, v{TT+1}, v{TT}, vcc\nv_accvgpr_write_b32 a{reg}, v{TT+1}')
        else:
            e(f's_nop 1\nv_cndmask_b32 v{reg}, v{reg}, v{TT}, vcc')
    gen_setup(0)
    for kt in range(18): gen_frag(MA0 + 4*kt, kt)
    k0_patch(MA0, 0)
    gen_setup(1)
    for kt in range(18): gen_frag(4*kt, kt, acc=True)
    k0_patch(0, 1, acc=True)
    e.label(f'{name}_nogen')
    e.stamp(2)
    DA = [216, 216]
    DA = [216, 232]
    PKA = 88
    e(f's_mul_i32 s36, s25, {2*18*1024}\ns_mul_i32 s37, s26, {9*1024}\ns_add_u32 s36, s36, s37')
    e('v_add_u32 v10, s36, v5')
    def a_mfma(kl):
        a0 = VA + kl*8; D = DA[kl & 1]
        out = []
        for pp in range(2):
            for nt in range(2):
                for c in range(2):
                    d = D + (nt*2+c)*4
                    cc = '0' if pp == 0 else f'v[{d}:{d+3}]'
                    out.append(f'v_mfma_f32_16x16x32_bf16 v[{d}:{d+3}], v[{a0+4*pp}:{a0+4*pp+3}], v[{gb(nt,pp,c)}:{gb(nt,pp,c)+3}], {cc}')
        return out
    def a_post(kl):
        D = DA[kl & 1]; out = []
        for nt in range(2):
            pk = PKA + nt*4
            for r in range(4): out.append(f'v_cvt_pk_bf16_f32 v{pk+r}, v{D+nt*8+r}, v{D+nt*8+4+r}')
            out.append(('ds', f'ds_write_b128 v10, v[{pk}:{pk+3}] offset:{(nt*18 + kl)*1024}'))
        return out
    pend = []
    for kl in range(9):
        n_after = 2*(8-kl)
        e(f's_waitcnt vmcnt({n_after})') if kl < 9 else None
        m = a_mfma(kl)
        for i, ins in enumerate(m):
            e(ins)
            if i >= 2:
                for _ in range(2):
                    if pend:
                        it = pend.pop(0)
                        e.ds(it[1]) if isinstance(it, tuple) else e(it)
        while pend:
            it = pend.pop(0)
            e.ds(it[1]) if isinstance(it, tuple) else e(it)
        pend = a_post(kl)
    while pend:
        it = pend.pop(0)
        e.ds(it[1]) if isinstance(it, tuple) else e(it)
    e.vq = []
    e.stamp(3)
    e.wait_all_ds(); e('s_barrier')
    e.stamp(4)
    e('s_cmp_eq_u32 s22, 3')
    e(f's_cbranch_scc1 {name}_fin')
    ACC = 96
    BB = 16
    e('v_add_u32 v11, 36864, v5')
    def bread(kt, mt):
        idx = mt*18 + kt
        base, off = (5, idx*1024) if idx < 36 else (11, (idx-36)*1024)
        b = BB + ((kt % 3)*4 + mt)*4
        e.ds(f'ds_read_b128 v[{b}:{b+3}], v{base} offset:{off}', ('B', kt, mt))
    for kt in range(2):
        for mt in range(4): bread(kt, mt)
    for kt in range(18):
        e.wait_ds(('B', kt, 3))
        for t in range(2):
            A = f'v[{MA0+4*kt}:{MA0+4*kt+3}]' if t == 0 else f'a[{4*kt}:{4*kt+3}]'
            for mt in range(4):
                b = BB + ((kt % 3)*4 + mt)*4
                a = ACC + (t*4+mt)*4
                c = '0' if kt == 0 else f'v[{a}:{a+3}]'
                e(f'v_mfma_f32_16x16x32_bf16 v[{a}:{a+3}], {A}, v[{b}:{b+3}], {c}')
                if t == 1 and kt + 2 < 18: bread(kt+2, mt)
    e.stamp(5)
    scale = 2.0/(2048*576)
    e('s_waitcnt vmcnt(0)')
    e(f's_lshl_b32 s39, s32, 10\ns_mul_i32 s40, s23, 73728\ns_add_u32 s39, s39, s40\ns_add_u32 s39, s39, {OFF_H}')
    e('v_lshlrev_b32 v12, 3, v3\nv_add_u32 v12, 73728, v12')
    e('s_mov_b32 s42, 0x3f803f80')
    TE = 128
    for mt in range(4):
        t0 = TE + mt*12
        o = t0
        for t in range(2):
            a = ACC + (t*4+mt)*4
            for r in range(4): e(f'v_mul_f32 v{a+r}, {lit(scale)}, v{a+r}')
            e(f'v_cvt_pk_bf16_f32 v{t0+4}, v{a}, v{a+1}\nv_cvt_pk_bf16_f32 v{t0+5}, v{a+2}, v{a+3}')
            for k in range(2):
                x = XR + 4*mt + 2*t + k
                e(f'v_lshlrev_b32 v{a+2*k}, 16, v{t0+4+k}\nv_and_b32 v{a+2*k+1}, 0xffff0000, v{t0+4+k}')
                e(f'v_lshlrev_b32 v{t0+6}, 16, v{x}\nv_and_b32 v{t0+7}, 0xffff0000, v{x}')
                e(f'v_add_f32 v{a+2*k}, v{a+2*k}, v{t0+6}\nv_add_f32 v{a+2*k+1}, v{a+2*k+1}, v{t0+7}')
            e(f'v_cvt_pk_bf16_f32 v{o+2*t}, v{a}, v{a+1}\nv_cvt_pk_bf16_f32 v{o+2*t+1}, v{a+2}, v{a+3}')
        e(f's_add_u32 s41, s39, {mt*18*1024}')
        e.vm(f'buffer_store_dwordx4 v[{o}:{o+3}], v5, s[{WS}:{WS+3}], s41 offen sc1')
        e(f'v_dot2_f32_bf16 v{t0+8}, v{o}, v{o}, 0\nv_dot2_f32_bf16 v{t0+9}, v{o}, s42, 0')
        for k in range(1, 4):
            e(f'v_dot2_f32_bf16 v{t0+8}, v{o+k}, v{o+k}, v{t0+8}\nv_dot2_f32_bf16 v{t0+9}, v{o+k}, s42, v{t0+9}')
        e.ds(f'ds_add_f32 v12, v{t0+9} offset:{mt*128}')
        e.ds(f'ds_add_f32 v12, v{t0+8} offset:{mt*128+4}')
    e.wait_all_ds()
    e.label(f'{name}_fin')
    e.stamp(6)
    e('s_barrier')
    e.stamp(7)
    e('s_cmp_lg_u32 s22, 3')
    e(f's_cbranch_scc1 {name}_end')
    e('ds_read_b64 v[10:11], v8')
    e(f's_mul_i32 s43, s23, 6\ns_add_u32 s43, s43, s24\ns_lshl_b32 s43, s43, 9\ns_add_u32 s43, s43, {OFF_ST}')
    e('v_lshlrev_b32 v13, 3, v1')
    e('s_waitcnt lgkmcnt(0)')
    e(f'buffer_store_dwordx2 v[10:11], v13, s[{WS}:{WS+3}], s43 offen')
    e(f's_branch {name}_end')
    e.label(f'{name}_side')
    e.vq = []; e.lq = []
    e(f's_sub_u32 s23, s2, {NMAIN}')
    e('s_and_b32 s24, s23, 7')
    e('s_lshr_b32 s25, s23, 3\ns_lshl_b32 s25, s25, 2\ns_add_u32 s25, s25, s22')
    e('s_waitcnt lgkmcnt(0)')
    srd_ws(e, WS, 4, WS_END)
    srd_ws(e, B1S, 20, F*2)
    e.label(f'{name}_sloop')
    e('s_and_b32 s26, s24, 3\ns_lshl_b32 s26, s26, 1\ns_lshr_b32 s27, s24, 2')
    e('s_add_u32 s28, s26, s27')
    e('s_xor_b32 s27, s27, 1\ns_add_u32 s29, s26, s27')
    e('s_mul_i32 s30, s28, 36\ns_add_u32 s30, s30, s25')
    e(f's_mul_i32 s31, s30, {18*1024}\ns_add_u32 s31, s31, {OFF_W1P}')
    e(f's_mul_hi_u32 s32, s25, {(2**32+8)//9}')
    e('s_lshl_b32 s33, s29, 2\ns_add_u32 s33, s33, s32\ns_mul_i32 s33, s33, 162\ns_lshl_b32 s34, s25, 2\ns_add_u32 s33, s33, s34\ns_mul_i32 s34, s32, 36\ns_sub_u32 s33, s33, s34')
    e(f's_lshl_b32 s33, s33, 10\ns_add_u32 s33, s33, {OFF_W1P}')
    for q in range(18):
        e.vm(f'buffer_load_dwordx4 v[{16+4*q}:{19+4*q}], v5, s[{WS}:{WS+3}], s31 offen offset:{(q % 4)*1024}', ('W', q))
        if q % 4 == 3: e('s_add_u32 s31, s31, 4096')
    e('s_lshl_b32 s29, s30, 5\nv_lshlrev_b32 v6, 1, v3')
    e.vm(f'buffer_load_ushort v7, v6, s[{B1S}:{B1S+3}], s29 offen', 'b1')
    for k in range(4):
        e.vm(f'buffer_load_dwordx4 v[{100+4*k}:{103+4*k}], v5, s[{WS}:{WS+3}], s33 offen offset:{k*1024}', 'PF')
    e('s_mov_b32 s34, 0x3f803f80')
    for k in range(4): e(f'v_mov_b32 v{96+k}, 0')
    for q in range(18):
        e.wait_vm(('W', q))
        for k in range(4): e(f'v_dot2_f32_bf16 v{96+k}, v{16+4*q+k}, s34, v{96+k}')
    e('v_add_f32 v96, v96, v97\nv_add_f32 v98, v98, v99\nv_add_f32 v96, v96, v98')
    e('v_mov_b32 v97, v96\ns_nop 1\nv_permlane32_swap_b32 v96, v97\nv_add_f32 v96, v96, v97')
    e('v_mov_b32 v97, v96\ns_nop 1\nv_permlane16_swap_b32 v96, v97\nv_add_f32 v96, v96, v97')
    e.wait_vm('b1')
    e('v_lshlrev_b32 v7, 16, v7')
    e('v_lshrrev_b32 v8, 2, v3\nv_lshlrev_b32 v8, 5, v8\nv_and_b32 v9, 3, v3\nv_lshl_add_u32 v8, v9, 2, v8')
    e(f's_lshl_b32 s31, s30, 7\ns_add_u32 s31, s31, {OFF_BC}')
    e('v_cmp_gt_u32 vcc, 16, v1\ns_and_saveexec_b64 s[32:33], vcc')
    e.vm(f'buffer_store_dword v7, v8, s[{WS}:{WS+3}], s31 offen')
    e.vm(f'buffer_store_dword v96, v8, s[{WS}:{WS+3}], s31 offen offset:16')
    e('s_mov_b64 exec, s[32:33]')
    e('s_waitcnt vmcnt(0)')
    e('s_cmp_ge_u32 s25, 4')
    e(f's_cbranch_scc1 {name}_end')
    e('s_add_u32 s25, s25, 32')
    e(f's_branch {name}_sloop')
    e.label(f'{name}_end')
    e.prof_dump(kidx, name)
    e.label(f'{name}_exit')
    e('s_endpgm')
    return kernel_header(name) + e.text(verbose=True) + kernel_desc(name, 256, 72)

if __name__ == '__main__':
    t = gen_k3()
    open('k3.s', 'w').write('; @launch kernel=k3_kernel grid=(264,1,1) block=(256,1,1) lds=74240\n.amdgcn_target "amdgcn-amd-amdhsa--gfx950"\n' + t)
```

```python
from asmlib import *
from layout import *
from k4 import srd_ws
from gen_common import *
from k3v2 import gen_k3 as _old

LDS_BL = 73728; LDS_ST = 147456; K3_LDS = LDS_ST + 6144

def side_job(e, name, NMAIN, WS, B1S):
    e.label(f'{name}_side')
    e.vq = []; e.lq = []
    e(f's_sub_u32 s23, s2, {NMAIN}')
    e('s_and_b32 s24, s23, 7')
    e('s_lshr_b32 s25, s23, 3\ns_lshl_b32 s25, s25, 2\ns_add_u32 s25, s25, s22')
    e('s_waitcnt lgkmcnt(0)')
    srd_ws(e, WS, 4, WS_END)
    srd_ws(e, B1S, 20, F*2)
    e.label(f'{name}_sloop')
    e('s_and_b32 s26, s24, 3\ns_lshl_b32 s26, s26, 1\ns_lshr_b32 s27, s24, 2')
    e('s_add_u32 s28, s26, s27')
    e('s_xor_b32 s27, s27, 1\ns_add_u32 s29, s26, s27')
    e('s_mul_i32 s30, s28, 36\ns_add_u32 s30, s30, s25')
    e(f's_mul_i32 s31, s30, {18*1024}\ns_add_u32 s31, s31, {OFF_W1P}')
    e(f's_mul_hi_u32 s32, s25, {(2**32+8)//9}')
    e('s_lshl_b32 s33, s29, 2\ns_add_u32 s33, s33, s32\ns_mul_i32 s33, s33, 162\ns_lshl_b32 s34, s25, 2\ns_add_u32 s33, s33, s34\ns_mul_i32 s34, s32, 36\ns_sub_u32 s33, s33, s34')
    e(f's_lshl_b32 s33, s33, 10\ns_add_u32 s33, s33, {OFF_W1P}')
    for q in range(18):
        e.vm(f'buffer_load_dwordx4 v[{16+4*q}:{19+4*q}], v5, s[{WS}:{WS+3}], s31 offen offset:{(q % 4)*1024}', ('W', q))
        if q % 4 == 3: e('s_add_u32 s31, s31, 4096')
    e('s_lshl_b32 s29, s30, 5\nv_lshlrev_b32 v6, 1, v3')
    e.vm(f'buffer_load_ushort v7, v6, s[{B1S}:{B1S+3}], s29 offen', 'b1')
    for k in range(4):
        e.vm(f'buffer_load_dwordx4 v[{100+4*k}:{103+4*k}], v5, s[{WS}:{WS+3}], s33 offen offset:{k*1024}', 'PF')
    e('s_mov_b32 s34, 0x3f803f80')
    for k in range(4): e(f'v_mov_b32 v{96+k}, 0')
    for q in range(18):
        e.wait_vm(('W', q))
        for k in range(4): e(f'v_dot2_f32_bf16 v{96+k}, v{16+4*q+k}, s34, v{96+k}')
    e('v_add_f32 v96, v96, v97\nv_add_f32 v98, v98, v99\nv_add_f32 v96, v96, v98')
    e('v_mov_b32 v97, v96\ns_nop 1\nv_permlane32_swap_b32 v96, v97\nv_add_f32 v96, v96, v97')
    e('v_mov_b32 v97, v96\ns_nop 1\nv_permlane16_swap_b32 v96, v97\nv_add_f32 v96, v96, v97')
    e.wait_vm('b1')
    e('v_lshlrev_b32 v7, 16, v7')
    e('v_lshrrev_b32 v8, 2, v3\nv_lshlrev_b32 v8, 5, v8\nv_and_b32 v9, 3, v3\nv_lshl_add_u32 v8, v9, 2, v8')
    e(f's_lshl_b32 s31, s30, 7\ns_add_u32 s31, s31, {OFF_BC}')
    e('v_cmp_gt_u32 vcc, 16, v1\ns_and_saveexec_b64 s[32:33], vcc')
    e.vm(f'buffer_store_dword v7, v8, s[{WS}:{WS+3}], s31 offen')
    e.vm(f'buffer_store_dword v96, v8, s[{WS}:{WS+3}], s31 offen offset:16')
    e('s_mov_b64 exec, s[32:33]')
    e('s_waitcnt vmcnt(0)'); e.vq = []
    e('s_cmp_ge_u32 s25, 4')
    e(f's_cbranch_scc1 {name}_end')
    e('s_add_u32 s25, s25, 32')
    e(f's_branch {name}_sloop')

def gen_k3(name='k3_kernel', kidx=2):
    e = Emit()
    WS = 8; XS = 12; B1S = 16
    NMAIN = 192; NSIDE = 64
    e(f's_cmp_ge_u32 s2, {NMAIN + NSIDE}')
    e(f's_cbranch_scc1 {name}_exit')
    e.prof_init()
    e('s_load_dwordx2 s[4:5], s[0:1], 80')
    e('s_load_dwordx2 s[6:7], s[0:1], 0')
    e('s_load_dwordx2 s[20:21], s[0:1], 40')
    e('v_lshrrev_b32 v2, 6, v0')
    e('v_and_b32 v1, 63, v0')
    e('v_readfirstlane_b32 s22, v2')
    e('v_and_b32 v3, 15, v1')
    e('v_lshrrev_b32 v4, 4, v1')
    e('v_lshlrev_b32 v5, 4, v1')
    e(f's_cmp_ge_u32 s2, {NMAIN}')
    e(f's_cbranch_scc1 {name}_side')
    e('s_and_b32 s23, s2, 31')
    e('s_lshr_b32 s24, s2, 5')
    e('s_lshr_b32 s25, s22, 1')
    e('s_and_b32 s26, s22, 1')
    e('s_lshl_b32 s27, s23, 1\ns_add_u32 s27, s27, s25')
    e('s_mul_i32 s32, s24, 3\ns_add_u32 s32, s32, s22')
    GB = 16
    def gb(nt, p, c): return GB + ((nt*2+p)*2+c)*4
    T0 = 228
    def gen_g1():
        e(f'v_cvt_f32_u32 v{T0}, v3')
        e(f'v_cvt_f32_u32 v{T0+1}, v4\nv_mul_f32 v{T0+1}, 4.0, v{T0+1}')
        e(f'v_cvt_f32_u32 v{T0+2}, s27')
        for nt in range(2):
            e(f'v_fmamk_f32 v{T0+3}, v{T0}, {lit(64.0)}, v{T0+2}')
            if nt: e(f'v_add_f32 v{T0+3}, {lit(1024.0)}, v{T0+3}')
            e(f'v_mul_f32 v{T0+3}, {lit(1.0/2048)}, v{T0+3}')
            e(f'v_mul_f32 v{T0+4}, v{T0+3}, v{T0+1}')
            for p in range(2):
                for r in range(4):
                    kk = 16*p + r
                    if kk: e(f'v_fmamk_f32 v{T0+6+r}, v{T0+3}, {lit(float(kk))}, v{T0+4}')
                    else: e(f'v_mov_b32 v{T0+6+r}, v{T0+4}')
                for r in range(4): cossin(e, T0+10+2*r, T0+6+r)
                for r in range(4):
                    c, s = T0+10+2*r, T0+11+2*r
                    e(f'v_cvt_pk_bf16_f32 v{gb(nt,p,0)+r}, v{c}, -v{s}')
                    e(f'v_cvt_pk_bf16_f32 v{gb(nt,p,1)+r}, v{s}, v{c}')
    e('v_and_b32 v6, 7, v3\nv_xor_b32 v7, v4, v6\nv_lshlrev_b32 v7, 4, v7\nv_lshl_add_u32 v7, v6, 7, v7\nv_lshrrev_b32 v6, 3, v3\nv_lshl_add_u32 v7, v6, 10, v7')
    e(f's_mul_i32 s28, s25, 36864\ns_mul_i32 s29, s26, {9*2048}\ns_add_u32 s28, s28, s29')
    e('v_add_u32 v7, s28, v7\nv_xor_b32 v8, 64, v7')
    e(f's_mul_i32 s28, s25, {2*18*1024}\ns_mul_i32 s29, s26, {9*1024}\ns_add_u32 s28, s28, s29\ns_add_u32 s28, s28, {LDS_BL}')
    e('v_add_u32 v10, s28, v5')
    VA = 48
    DA = [72, 88]
    PKA = 104
    def stage_a(chunk):
        kls = [3*chunk + i for i in range(3)]
        for kl in kls:
            for p in range(2):
                b = VA + ((kl % 3)*2 + p)*4
                e.ds(f'ds_read_b128 v[{b}:{b+3}], v{7+p} offset:{kl*2048}', ('VA', kl))
        pend = []
        def flush(n):
            for _ in range(n):
                if pend:
                    it = pend.pop(0)
                    e.ds(it[1]) if isinstance(it, tuple) else e(it)
        for kl in kls:
            e.wait_ds(('VA', kl))
            D = DA[kl & 1]; a0 = VA + (kl % 3)*8
            i = 0
            for pp in range(2):
                for nt in range(2):
                    for c in range(2):
                        d = D + (nt*2+c)*4
                        cc = '0' if pp == 0 else f'v[{d}:{d+3}]'
                        e(f'v_mfma_f32_16x16x32_bf16 v[{d}:{d+3}], v[{a0+4*pp}:{a0+4*pp+3}], v[{gb(nt,pp,c)}:{gb(nt,pp,c)+3}], {cc}')
                        if i >= 2: flush(2)
                        i += 1
            flush(100)
            for nt in range(2):
                pk = PKA + nt*4
                for r in range(4): pend.append(f'v_cvt_pk_bf16_f32 v{pk+r}, v{D+nt*8+r}, v{D+nt*8+4+r}')
                pend.append(('ds', f'ds_write_b128 v10, v[{pk}:{pk+3}] offset:{(nt*18 + kl)*1024}'))
        flush(100)
    e('s_cmp_eq_u32 s22, 3')
    e(f's_cbranch_scc1 {name}_loader')
    gen_g1()
    MA0 = 112
    XR = 184
    R1, R16, S0, TC = T0+8, T0+10, T0+12, T0+14
    S1, S2_, S3, TT = T0+16, T0+18, T0+20, T0+22
    def gen_setup(t):
        e(f's_lshl_b32 s36, s32, 5\ns_add_u32 s36, s36, {4*t}')
        e(f'v_lshrrev_b32 v{T0+6}, 2, v3\nv_lshlrev_b32 v{T0+6}, 3, v{T0+6}\nv_and_b32 v{T0+7}, 3, v3\nv_add3_u32 v{T0+6}, v{T0+6}, v{T0+7}, s36')
        e(f'v_cvt_f32_u32 v{T0+6}, v{T0+6}\nv_mul_f32 v{T0+6}, {lit(1.0/576)}, v{T0+6}')
        cossin(e, R1, T0+6)
        e(f'v_mul_f32 v{T0+7}, {lit(16.0)}, v{T0+6}\nv_fract_f32 v{T0+7}, v{T0+7}')
        cossin(e, R16, T0+7)
        e(f'v_mul_f32 v{T0+7}, v{T0+6}, v{T0+1}\nv_fract_f32 v{T0+7}, v{T0+7}')
        cossin(e, S0, T0+7)
        e(f'v_add_f32 v{TC}, v{R1}, v{R1}')
    def gen_frag(dst, kt, acc=False):
        rot(e, S1, S0, R1, TT)
        cheb(e, S2_, S1, TC, S0)
        cheb(e, S3, S2_, TC, S1)
        for r, sreg in enumerate((S0, S1, S2_, S3)):
            if acc: e(f'v_cvt_pk_bf16_f32 v{TT}, v{sreg}, -v{sreg+1}\nv_accvgpr_write_b32 a{dst+r}, v{TT}')
            else: e(f'v_cvt_pk_bf16_f32 v{dst+r}, v{sreg}, -v{sreg+1}')
        if kt < 17: rot(e, S0, S0, R16, TT)
    def k0_patch(reg, acc=False):
        e(f'v_and_b32 v{TT}, 1, v3\nv_lshlrev_b32 v{TT}, 31, v{TT}\nv_or_b32 v{TT}, 0x3f003f00, v{TT}')
        e(f'v_cmp_eq_u32 vcc, 0, v4')
        if acc: e(f'v_accvgpr_read_b32 v{TT+1}, a{reg}\ns_nop 1\nv_cndmask_b32 v{TT+1}, v{TT+1}, v{TT}, vcc\nv_accvgpr_write_b32 a{reg}, v{TT+1}')
        else: e(f's_nop 1\nv_cndmask_b32 v{reg}, v{reg}, v{TT}, vcc')
    gen_setup(0)
    for kt in range(18): gen_frag(MA0 + 4*kt, kt)
    k0_patch(MA0)
    gen_setup(1)
    for kt in range(18): gen_frag(4*kt, kt, acc=True)
    k0_patch(0, acc=True)
    e('s_waitcnt lgkmcnt(0)')
    srd_ws(e, WS, 4, WS_END)
    srd_ws(e, XS, 6, S*D*2)
    e('v_mul_u32_u24 v9, 73728, v3\nv_lshl_add_u32 v9, v4, 4, v9')
    e('s_lshl_b32 s33, s32, 6\ns_mul_i32 s34, s23, 2304\ns_add_u32 s33, s33, s34')
    e.stamp(2)
    for chunk in range(3):
        e('s_barrier')
        if chunk == 0: e.stamp(3)
        if chunk == 1:
            for mt in range(4):
                si, nt = mt >> 1, mt & 1
                e(f's_add_u32 s35, s33, {si*1152 + nt*16*73728}')
                e.vm(f'buffer_load_dwordx4 v[{XR+4*mt}:{XR+4*mt+3}], v9, s[{XS}:{XS+3}], s35 offen', ('X', mt))
        stage_a(chunk)
    e.wait_all_ds()
    e.stamp(4)
    e('s_barrier')
    ACC = 72
    BB = 16
    e(f'v_add_u32 v11, {LDS_BL}, v5\nv_add_u32 v12, {LDS_BL + 36864}, v5')
    def bread(kt, mt):
        idx = mt*18 + kt
        base, off = (11, idx*1024) if idx < 36 else (12, (idx-36)*1024)
        b = BB + ((kt % 3)*4 + mt)*4
        e.ds(f'ds_read_b128 v[{b}:{b+3}], v{base} offset:{off}', ('B', kt, mt))
    for kt in range(2):
        for mt in range(4): bread(kt, mt)
    for kt in range(18):
        e.wait_ds(('B', kt, 3))
        for t in range(2):
            A = f'v[{MA0+4*kt}:{MA0+4*kt+3}]' if t == 0 else f'a[{4*kt}:{4*kt+3}]'
            for mt in range(4):
                b = BB + ((kt % 3)*4 + mt)*4
                a = ACC + (t*4+mt)*4
                c = '0' if kt == 0 else f'v[{a}:{a+3}]'
                e(f'v_mfma_f32_16x16x32_bf16 v[{a}:{a+3}], {A}, v[{b}:{b+3}], {c}')
                if t == 1 and kt + 2 < 18: bread(kt+2, mt)
    e.stamp(5)
    scale = 2.0/(2048*576)
    e.wait_vm(('X', 3))
    e(f's_lshl_b32 s39, s32, 10\ns_mul_i32 s40, s23, 73728\ns_add_u32 s39, s39, s40\ns_add_u32 s39, s39, {OFF_H}')
    e(f's_lshl_b32 s40, s22, 11\ns_add_u32 s40, s40, {LDS_ST}\nv_lshlrev_b32 v13, 9, v4\nv_lshl_add_u32 v13, v3, 3, v13\nv_add_u32 v13, s40, v13')
    e('s_mov_b32 s42, 0x3f803f80')
    TE = 112
    for mt in range(4):
        t0 = TE + mt*16
        o = t0
        for t in range(2):
            a = ACC + (t*4+mt)*4
            for r in range(4): e(f'v_mul_f32 v{a+r}, {lit(scale)}, v{a+r}')
            e(f'v_cvt_pk_bf16_f32 v{t0+4+2*t}, v{a}, v{a+1}\nv_cvt_pk_bf16_f32 v{t0+5+2*t}, v{a+2}, v{a+3}')
        for t in range(2):
            a = ACC + (t*4+mt)*4
            for k in range(2):
                x = XR + 4*mt + 2*t + k; y = t0+4+2*t+k
                e(f'v_lshlrev_b32 v{a+2*k}, 16, v{y}\nv_and_b32 v{a+2*k+1}, 0xffff0000, v{y}')
                e(f'v_lshlrev_b32 v{t0+8}, 16, v{x}\nv_and_b32 v{t0+9}, 0xffff0000, v{x}')
                e(f'v_add_f32 v{a+2*k}, v{a+2*k}, v{t0+8}\nv_add_f32 v{a+2*k+1}, v{a+2*k+1}, v{t0+9}')
            e(f'v_cvt_pk_bf16_f32 v{o+2*t}, v{a}, v{a+1}\nv_cvt_pk_bf16_f32 v{o+2*t+1}, v{a+2}, v{a+3}')
        e(f's_add_u32 s41, s39, {mt*18*1024}')
        e.vm(f'buffer_store_dwordx4 v[{o}:{o+3}], v5, s[{WS}:{WS+3}], s41 offen sc1')
        e(f'v_dot2_f32_bf16 v{t0+10}, v{o}, s42, 0\nv_dot2_f32_bf16 v{t0+11}, v{o}, v{o}, 0')
        for k in range(1, 4):
            e(f'v_dot2_f32_bf16 v{t0+10}, v{o+k}, s42, v{t0+10}\nv_dot2_f32_bf16 v{t0+11}, v{o+k}, v{o+k}, v{t0+11}')
        e.ds(f'ds_write_b64 v13, v[{t0+10}:{t0+11}] offset:{mt*128}')
    e.wait_all_ds()
    e.stamp(6)
    e('s_barrier')
    e(f's_branch {name}_end')
    e.label(f'{name}_loader')
    e.vq = []; e.lq = []
    e('v_lshrrev_b32 v9, 3, v1\nv_and_b32 v11, 7, v1\nv_xor_b32 v11, v11, v9\nv_lshlrev_b32 v11, 4, v11\nv_lshl_add_u32 v9, v9, 7, v11')
    e(f's_lshl_b32 s33, s23, 1\ns_mul_i32 s33, s33, 36864\ns_add_u32 s33, s33, {OFF_V}')
    gen_g1()
    e('s_waitcnt lgkmcnt(0)')
    e.stamp(9)
    srd_ws(e, WS, 4, WS_END)
    for u in range(9):
        for si in range(2):
            for half in range(2):
                beta = 2*(9*half + u)
                off = si*36864 + beta*1024
                e(f's_add_u32 s34, s33, {off}\ns_mov_b32 m0, {off}')
                e('s_nop 0')
                e.vm(f'buffer_load_dwordx4 v9, s[{WS}:{WS+3}], s34 offen lds', ('D', u))
                e.vm(f'buffer_load_dwordx4 v9, s[{WS}:{WS+3}], s34 offen offset:1024 lds', ('D', u))
        if u == 2:
            e.stamp(1)
    for chunk in range(3):
        e.wait_vm(('D', 3*chunk+2))
        e('s_barrier')
        stage_a(chunk)
    e.wait_all_ds()
    e('s_barrier')
    e(f'v_lshlrev_b32 v13, 3, v1\nv_add_u32 v13, {LDS_ST}, v13')
    e(f's_mul_i32 s43, s23, 6\ns_add_u32 s43, s43, s24\ns_lshl_b32 s43, s43, 9\ns_add_u32 s43, s43, {OFF_ST}')
    e('v_lshlrev_b32 v14, 3, v1')
    e('s_barrier')
    for k in range(12): e.ds(f'ds_read_b64 v[{16+2*k}:{17+2*k}], v13 offset:{k*512}', ('S', k))
    e.wait_all_ds()
    for k in range(1, 12): e(f'v_add_f32 v16, v16, v{16+2*k}\nv_add_f32 v17, v17, v{17+2*k}')
    e.vm(f'buffer_store_dwordx2 v[16:17], v14, s[{WS}:{WS+3}], s43 offen')
    e(f's_branch {name}_end')
    side_job(e, name, NMAIN, WS, B1S)
    e.label(f'{name}_end')
    e.prof_dump(kidx, name)
    e.label(f'{name}_exit')
    e('s_endpgm')
    return kernel_header(name) + e.text(verbose=True) + kernel_desc(name, 256, 72)

if __name__ == '__main__':
    t = gen_k3()
    open('k3.s', 'w').write(f'; @launch kernel=k3_kernel grid=(256,1,1) block=(256,1,1) lds={K3_LDS}\n.amdgcn_target "amdgcn-amd-amdhsa--gfx950"\n' + t)
```

```python
from asmlib import *
from layout import *
from k4 import srd_ws, K1C, K2C

def gen_k4(name='k4_kernel', rate=(2,2,1,2,2), rate2=(2,2,1,2,2), LA=12, awg=3, defer=(4, 12), store_mod='', nh0=10, na0=4, kidx=3, npool=6, HCH=3, dbg='', xmap=1, sp=2):
    e = Emit()
    WS = 8
    vL16 = 1; vTmp = 2; vHB0 = 3; vHB1 = 4; vG0 = 5; vG1 = 6; vGR0 = 7; vGR1 = 8; vK1 = 9; vBCo = 10; vLane = 11
    RINV = 12; C0 = 16
    RING = 20
    BX = 92
    POOL = 124
    BCB = POOL + 16*npool
    Z = BCB + 16; T = Z + 4; PK = T + 4; OUT = PK + 4
    assert OUT + 8 <= 256, OUT
    ST = RING + 40
    ST = POOL + 16*(npool-1)
    def ring(n): b = RING + 4*(n % 18); return f'v[{b}:{b+3}]'
    def bc(q, mt):
        if q < 16: b = (q*4+mt)*4; return f'a[{b}:{b+3}]'
        b = BX + ((q-16)*4+mt)*4; return f'v[{b}:{b+3}]'
    free_sets = list(range(npool))
    def alloc():
        assert free_sets, 'pool exhausted'
        return POOL + 16*free_sets.pop(0)
    def release(base): free_sets.append((base - POOL)//16)
    LDS_G = 73728
    e('s_cmp_ge_u32 s2, 256')
    e(f's_cbranch_scc1 {name}_exit')
    e.prof_init()
    e('s_load_dwordx2 s[4:5], s[0:1], 80')
    e('v_lshrrev_b32 v2, 6, v0')
    e(f'v_and_b32 v{vLane}, 63, v0')
    e('v_readfirstlane_b32 s12, v2')
    e(f'v_lshlrev_b32 v{vL16}, 4, v{vLane}')
    if xmap:
        e('s_and_b32 s14, s2, 3\ns_lshl_b32 s14, s14, 1\ns_lshr_b32 s13, s2, 3\ns_and_b32 s15, s13, 1\ns_add_u32 s14, s14, s15')
        e('s_lshr_b32 s13, s13, 1\ns_bfe_u32 s15, s2, 0x10002\ns_lshl_b32 s15, s15, 4\ns_add_u32 s13, s13, s15')
    else:
        e('s_lshr_b32 s13, s2, 3')
        e('s_and_b32 s14, s2, 7')
    e('s_mul_i32 s15, s13, 73728')
    e('s_mul_i32 s16, s12, 18432')
    e('s_add_u32 s17, s15, s16')
    e(f's_add_u32 s17, s17, {OFF_H}')
    e('s_mov_b32 s18, s16')
    e('s_lshl_b32 s19, s14, 2\ns_add_u32 s19, s19, s12')
    e(f's_mul_i32 s20, s19, {162*1024}')
    e(f's_add_u32 s21, s20, {OFF_W1P}')
    e(f's_add_u32 s22, s20, {OFF_W2P}')
    e(f's_mul_i32 s23, s19, {9*128}\ns_add_u32 s23, s23, {OFF_BC}')
    e(f'v_lshrrev_b32 v{vBCo}, 4, v{vLane}\nv_lshlrev_b32 v{vBCo}, 5, v{vBCo}')
    e(f's_mul_i32 s24, s13, {6*512}\ns_add_u32 s24, s24, {OFF_ST}')
    e(f'v_lshlrev_b32 v{vTmp}, 3, v{vLane}')
    e(f's_mul_i32 s25, s14, 2359296\ns_add_u32 s25, s25, s15\ns_add_u32 s25, s25, s16\ns_add_u32 s25, s25, {OFF_P}')
    e(f'v_mov_b32 v{vHB0}, v{vL16}\nv_add_u32 v{vHB1}, 36864, v{vL16}')
    e('s_lshr_b32 s26, s12, 1\ns_lshl_b32 s26, s26, 12\ns_and_b32 s27, s12, 1\ns_lshl_b32 s27, s27, 3\ns_add_u32 s26, s26, s27')
    e(f's_add_u32 s26, s26, {LDS_G}')
    e(f'v_add_u32 v{vG0}, s26, v{vL16}\nv_add_u32 v{vG1}, 32768, v{vG0}')
    e(f'v_add_u32 v{vGR0}, {LDS_G}, v{vL16}\nv_add_u32 v{vGR1}, 36864, v{vGR0}')
    e(f'v_mov_b32 v{vK1}, {lit(K1C)}')
    e('s_waitcnt lgkmcnt(0)')
    e.stamp(9)
    srd_ws(e, WS, 4, WS_END)
    groups = []
    for q in range(18):
        for p in range(sp): groups.append(('1', p, q, p*18+q))
    for p in range(sp, 9):
        for q in range(18): groups.append(('1', p, q, p*18+q))
    nd, nq = defer
    for dt in range(nd):
        for q in range(nq): groups.append(('2', dt, q, dt*18+q))
    for dt in range(nd):
        for q in range(nq, 18): groups.append(('2', dt, q, dt*18+q))
    for dt in range(nd, 9):
        for q in range(18): groups.append(('2', dt, q, dt*18+q))
    NG = len(groups)
    win = {'1': None, '2': None}
    def aload(n):
        kind, _, _, fi = groups[n]
        if 'sameA' in dbg: fi = fi % 4
        base = 21 if kind == '1' else 22
        cur = 28 if kind == '1' else 29
        w = fi >> 2
        if win[kind] != w:
            e(f's_add_u32 s{cur}, s{base}, {w*4096}'); win[kind] = w
        e.vm(f'buffer_load_dwordx4 {ring(n)}, v{vL16}, s[{WS}:{WS+3}], s{cur} offen offset:{(fi & 3)*1024}', ('A', n))
    hwin = [None]
    def hdma(q):
        if 'noH' in dbg: return
        w = q >> 2
        if hwin[0] != w:
            e(f's_add_u32 m0, s18, {w*4096}')
            e(f's_add_u32 s30, s17, {w*4096}'); hwin[0] = w
        e.vm(f'buffer_load_dwordx4 v{vL16}, s[{WS}:{WS+3}], s30 offen offset:{(q & 3)*1024} lds', ('H', q))
    def bcload(p):
        b = BCB + (p & 1)*8
        e.vm(f'buffer_load_dwordx4 v[{b}:{b+3}], v{vBCo}, s[{WS}:{WS+3}], s23 offen offset:{p*128}', ('BC', p, 0))
        e.vm(f'buffer_load_dwordx4 v[{b+4}:{b+7}], v{vBCo}, s[{WS}:{WS+3}], s23 offen offset:{p*128+16}', ('BC', p))
    if 'probe' in dbg:
        e(f'buffer_load_dword v{Z}, v{vL16}, s[{WS}:{WS+3}], s21 offen\ns_waitcnt vmcnt(0)'); e.stamp(7)
        e(f'buffer_load_dword v{Z}, v{vL16}, s[{WS}:{WS+3}], s17 offen\ns_waitcnt vmcnt(0)'); e.stamp(8)
        e(f'buffer_load_dword v{Z}, v{vL16}, s[{WS}:{WS+3}], s22 offen\ns_waitcnt vmcnt(0)'); e.stamp(10)
    for q in range(max(nh0, na0)):
        if q < nh0: hdma(q)
        if q < na0: aload(q)
    nh = nh0; na = na0
    e.stamp(1)
    fq = []
    def F(ms, s): fq.append((ms, s))
    cur = {'slot': 0}
    MS0 = 40
    def st_loads():
        if 'noST' in dbg: return
        for cb in range(6):
            e.vm(f'buffer_load_dwordx2 v[{ST+2*cb}:{ST+2*cb+1}], v{vTmp}, s[{WS}:{WS+3}], s24 offen offset:{cb*512}', ('ST', cb))
        bcload(0); bcload(1)
    S = lambda s: F(MS0, s)
    F(MS0, lambda: e.wait_vm(('ST', 5)))
    for cb in range(1, 6):
        S(f'v_add_f32 v{ST}, v{ST}, v{ST+2*cb}'); S(f'v_add_f32 v{ST+1}, v{ST+1}, v{ST+2*cb+1}')
    S(f'v_mul_f32 v{ST}, {lit(1.0/576)}, v{ST}')
    S(f'v_mul_f32 v{ST+1}, {lit(1.0/576)}, v{ST+1}')
    S(f'v_fma_f32 v{ST+1}, -v{ST}, v{ST}, v{ST+1}')
    S(f'v_max_f32 v{ST+1}, 0, v{ST+1}')
    S(f'v_cvt_pk_bf16_f32 v{ST+2}, v{ST}, v{ST+1}')
    S(f'v_lshlrev_b32 v{ST+3}, 16, v{ST+2}')
    S(f'v_and_b32 v{ST+4}, 0xffff0000, v{ST+2}')
    S(f'v_add_f32 v{ST+4}, {lit(1e-5)}, v{ST+4}')
    S(f'v_cvt_pk_bf16_f32 v{ST+4}, v{ST+4}, v{ST+4}')
    S(f'v_and_b32 v{ST+4}, 0xffff0000, v{ST+4}')
    S(f'v_sqrt_f32 v{ST+4}, v{ST+4}')
    S(f'v_cvt_pk_bf16_f32 v{ST+4}, v{ST+4}, v{ST+4}')
    S(f'v_and_b32 v{ST+4}, 0xffff0000, v{ST+4}')
    S(f'v_rcp_f32 v{ST+4}, v{ST+4}')
    S(f'v_mul_f32 v{ST+3}, v{ST+3}, v{ST+4}')
    S(f'v_sub_f32 v{ST+3}, 0, v{ST+3}')
    S(f'v_and_b32 v{ST+5}, 15, v0')
    S(f'v_lshlrev_b32 v{ST+5}, 2, v{ST+5}')
    for mt in range(4): S(f'v_add_u32 v{ST+6+mt}, {mt*64}, v{ST+5}')
    for mt in range(4):
        F(MS0, (lambda mt=mt: e.ds(f'ds_bpermute_b32 v{RINV+mt}, v{ST+6+mt}, v{ST+4}', ('RP', mt))))
        F(MS0, (lambda mt=mt: e.ds(f'ds_bpermute_b32 v{C0+mt}, v{ST+6+mt}, v{ST+3}', ('CP', mt))))
    gw_slot = {}; hset = {}; oset = {}
    def gelu_items(p):
        ms = (72*(p+1) if p >= sp else 72*sp - 4*(sp-1-p)) + 1
        bcb = BCB + (p & 1)*8
        if p == 0: F(ms, lambda: e.wait_ds(('CP', 3)))
        F(ms, lambda p=p: e.wait_vm(('BC', p)))
        for mt in range(4):
            def A(r, mt=mt, p=p): return hset[p] + mt*4 + r
            for r in range(4): F(ms, f'v_fma_f32 v{T+r}, v{C0+mt}, v{bcb+4+r}, v{bcb+r}')
            for r in range(4): F(ms, (lambda r=r, mt=mt, A=A: e(f'v_fma_f32 v{Z+r}, v{A(r)}, v{RINV+mt}, v{T+r}')))
            for r in range(4): F(ms, f'v_mul_f32 v{T+r}, v{Z+r}, v{Z+r}')
            for r in range(4): F(ms, f'v_fmaak_f32 v{T+r}, v{T+r}, v{vK1}, {lit(K2C)}')
            for r in range(4): F(ms, f'v_mul_f32 v{T+r}, v{Z+r}, v{T+r}')
            for r in range(4): F(ms, f'v_exp_f32 v{T+r}, v{T+r}')
            for r in range(4): F(ms, f'v_add_f32 v{T+r}, 1.0, v{T+r}')
            for r in range(4): F(ms, f'v_rcp_f32 v{T+r}, v{T+r}')
            for r in range(4): F(ms, f'v_mul_f32 v{Z+r}, v{Z+r}, v{T+r}')
            pk = PK + (mt & 1)*2
            F(ms, f'v_cvt_pk_bf16_f32 v{pk}, v{Z}, v{Z+1}')
            F(ms, f'v_cvt_pk_bf16_f32 v{pk+1}, v{Z+2}, v{Z+3}')
            base, off = (vG0, p*8192 + mt*1024) if p < 4 else (vG1, (p-4)*8192 + mt*1024)
            def wr(base=base, off=off, pk=pk, p=p, mt=mt):
                e.ds(f'ds_write_b64 v{base}, v[{pk}:{pk+1}] offset:{off}', ('GW', p, mt))
                if mt == 3:
                    gw_slot[p] = cur['slot']; release(hset[p])
            F(ms, wr)
        if p + 2 < 9: F(ms, lambda p=p: bcload(p+2))
    for p in range(9): gelu_items(p)
    oq = []
    def drain(n, slot, q=None):
        k = 0
        for Q in (oq, fq):
            while Q and k < n and Q[0][0] <= slot:
                _, it = Q.pop(0)
                if callable(it):
                    before = len(e.L); it()
                    if len(e.L) > before: k += 1
                else:
                    e(it); k += 1
    last_barrier = {'slot': -1}
    def barrier(slot):
        e.wait_all_ds(); e('s_barrier'); last_barrier['slot'] = slot
    def bread(q, mt):
        if 'noB' in dbg: return
        idx = mt*18 + q
        base, off = (vHB0, idx*1024) if idx < 36 else (vHB1, (idx-36)*1024)
        e.ds(f'ds_read_b128 {bc(q, mt)}, v{base} offset:{off}', ('B', q, mt))
    def gread(q2, mt):
        idx = q2*4 + mt
        base, off = (vGR0, idx*1024) if idx < 36 else (vGR1, (idx-36)*1024)
        e.ds(f'ds_read_b128 {bc(q2, mt)}, v{base} offset:{off}', ('G', q2, mt))
    e.wait_vm(('H', HCH-1)); e('s_barrier')
    e.stamp(2)
    hvis = HCH
    jit = []
    for t in range(72): jit.append([(t//4)*sp*4 + (t % 4) - LA, 'B', t//4, t % 4])
    g0 = 648
    pos = g0
    for n in range(162, NG):
        kind, dt, q, fi = groups[n]
        if dt == 0:
            for mt in range(4): jit.append([pos + mt - LA, 'G', q, mt])
        pos += 4
    jit.sort(key=lambda x: x[0])
    st_issued = [False]
    STN = 8 if 'ST8' in dbg else 2
    def do_jit(slot):
        while jit and jit[0][0] <= slot:
            _, kind, q, mt = jit[0]
            if kind == 'B':
                if q >= hvis:
                    nv = min(hvis + HCH, 18)
                    while nh_[0] < nv: hdma(nh_[0]); nh_[0] += 1
                    e.wait_vm(('H', nv-1)); e('s_barrier'); hvis_set(nv)
                bread(q, mt)
            else:
                p = q >> 1
                last_use = 8*72 + q*4 + mt
                if slot <= last_use: return
                if p not in gw_slot:
                    while p not in gw_slot:
                        _, it = fq.pop(0)
                        it() if callable(it) else e(it)
                if last_barrier['slot'] <= gw_slot[p]: barrier(slot)
                gread(q, mt)
            jit.pop(0)
    nh_ = [nh]
    def hvis_set(v):
        nonlocal hvis
        hvis = v
    do_jit(-1)
    slot = 0
    outk = [0]
    for n, (kind, idx, q, fi) in enumerate(groups):
        if n == 18*sp: e.stamp(3)
        if 'probe' not in dbg:
            if n == 6: e.stamp(7)
            if n == 12: e.stamp(8)
            if n == 36: e.stamp(10)
        if n == 162: e.stamp(4)
        for mt in range(4):
            cur['slot'] = slot
            if mt == 0:
                if kind == '1' and q == 0: hset[idx] = alloc()
                if kind == '2' and q == 0: oset[idx] = alloc()
                if n % awg == 0 or n < 18: e.wait_vm(('A', min(n + (awg-1 if n >= 18 else 0), NG-1)))
            if kind == '1' and idx == 0 and mt == 0: e.wait_ds(('B', q, 3))
            if kind == '2' and idx == 0 and mt == 0: e.wait_ds(('G', q, 3))
            a = (hset if kind == '1' else oset)[idx] + mt*4
            c = '0' if q == 0 else f'v[{a}:{a+3}]'
            e(f'v_mfma_f32_16x16x32_bf16 v[{a}:{a+3}], {ring(n)}, {bc(q, mt)}, {c}')
            if mt == 3:
                cnt = 0
                while na < min(NG, n + 19) and cnt < 2:
                    aload(na); na += 1; cnt += 1
            elif mt == 1:
                if na < min(NG, n + 18): aload(na); na += 1
            if nh_[0] < 18 and (mt % sp == 0): hdma(nh_[0]); nh_[0] += 1
            if n == STN and mt == 2 and not st_issued[0]:
                st_loads(); st_issued[0] = True
            do_jit(slot)
            r = rate if kind == '1' else rate2
            drain(r[slot % len(r)], slot)
            slot += 1
            if kind == '2' and q == 17 and mt == 3:
                dt = idx; base = oset[dt]
                for a2 in range(2):
                    o = OUT + 4*a2
                    for t in range(2):
                        acc = base + (2*a2+t)*4
                        oq.append((slot + 2, f'v_cvt_pk_bf16_f32 v{o+2*t}, v{acc}, v{acc+1}'))
                        oq.append((slot + 2, f'v_cvt_pk_bf16_f32 v{o+2*t+1}, v{acc+2}, v{acc+3}'))
                    k = dt*2 + a2
                    def st(o=o, k=k):
                        e(f's_add_u32 s31, s25, {(k >> 2)*4096}')
                        e.vm(f'buffer_store_dwordx4 v[{o}:{o+3}], v{vL16}, s[{WS}:{WS+3}], s31 offen offset:{(k & 3)*1024} {store_mod}')
                    oq.append((slot + 2, st))
                oq.append((slot + 2, (lambda base=base: release(base))))
    e.stamp(5)
    cur['slot'] = slot + 100
    drain(10**6, slot + 100)
    assert not fq and not oq
    e.stamp(6)
    e.label(f'{name}_end')
    e.prof_dump(kidx, name)
    e.label(f'{name}_exit')
    e('s_endpgm')
    return kernel_header(name) + e.text(verbose=True) + kernel_desc(name, 256, 256), gw_slot

if __name__ == '__main__':
    t, gw = gen_k4()
    print(gw)
    open('k4.s', 'w').write('; @launch kernel=k4_kernel grid=(256,1,1) block=(256,1,1) lds=147456\n.amdgcn_target "amdgcn-amd-amdhsa--gfx950"\n' + t)
```

```python
from asmlib import *
from layout import *
from k4 import srd_ws

def gen_k5(name='k5_kernel'):
    e = Emit()
    WS = 8; OUT = 12; B2 = 16
    e('s_cmp_ge_u32 s2, 1152')
    e(f's_cbranch_scc1 {name}_exit')
    e.prof_init()
    e('s_load_dwordx2 s[4:5], s[0:1], 80')
    e('s_load_dwordx2 s[6:7], s[0:1], 64')
    e('s_load_dwordx2 s[20:21], s[0:1], 56')
    e('v_and_b32 v1, 63, v0')
    e('v_lshlrev_b32 v3, 4, v1')
    e('s_mov_b32 s23, s2')
    e(f's_mul_hi_u32 s24, s23, {(2**32 + 35)//36}')
    e('s_mul_i32 s25, s24, 36\ns_sub_u32 s25, s23, s25')
    e('s_cmp_ge_u32 s25, 18\ns_cselect_b32 s26, 1, 0')
    e('s_mul_i32 s27, s26, 18\ns_sub_u32 s27, s25, s27')
    e('s_mul_i32 s28, s24, 73728')
    for t in range(2):
        e(f's_lshl_b32 s29, s27, 1\ns_add_u32 s29, s29, {t}')
        e(f's_mul_hi_u32 s30, s29, {(2**32 + 8)//9}')
        e('s_mul_i32 s31, s30, 9\ns_sub_u32 s31, s29, s31')
        e('s_mul_i32 s30, s30, 18432\ns_lshl_b32 s31, s31, 1\ns_add_u32 s31, s31, s26\ns_lshl_b32 s31, s31, 10')
        e(f's_add_u32 s{32+t}, s30, s31\ns_add_u32 s{32+t}, s{32+t}, s28\ns_add_u32 s{32+t}, s{32+t}, {OFF_P}')
    e(f's_mul_i32 s30, s26, {2*18*1024}\ns_lshl_b32 s31, s27, 10\ns_add_u32 s34, s30, s31\ns_add_u32 s34, s34, s28\ns_add_u32 s34, s34, {OFF_H}')
    e(f's_add_u32 s35, s34, {18*1024}')
    e('v_lshrrev_b32 v4, 4, v1')
    e('v_lshlrev_b32 v5, 4, v4')
    e('s_lshl_b32 s36, s27, 6')
    e('s_waitcnt lgkmcnt(0)')
    e.stamp(9)
    srd_ws(e, WS, 4, WS_END)
    srd_ws(e, OUT, 6, S*D*2)
    srd_ws(e, B2, 20, D*2)
    PB = 16
    for j in range(8):
        for t in range(2):
            b = PB + (j*2+t)*4
            e.vm(f'buffer_load_dwordx4 v[{b}:{b+3}], v3, s[{WS}:{WS+3}], s{32+t} offen', ('P', j, t))
        if j < 7: e('s_add_u32 s32, s32, 2359296\ns_add_u32 s33, s33, 2359296')
    HB = 80
    e.vm(f'buffer_load_dwordx4 v[{HB}:{HB+3}], v3, s[{WS}:{WS+3}], s34 offen', 'H0')
    e.vm(f'buffer_load_dwordx4 v[{HB+4}:{HB+7}], v3, s[{WS}:{WS+3}], s35 offen', 'H1')
    BB = 88
    e.vm(f'buffer_load_dwordx4 v[{BB}:{BB+3}], v5, s[{B2}:{B2+3}], s36 offen', 'B1')
    e.stamp(1)
    e('v_and_b32 v6, 15, v1')
    e('v_mul_u32_u24 v6, 73728, v6')
    e('v_add_u32 v6, v6, v5')
    e('s_lshl_b32 s37, s24, 1\ns_add_u32 s37, s37, s26\ns_mul_i32 s37, s37, 1152\ns_add_u32 s37, s37, s36')
    e(f's_add_u32 s38, s37, {16*64*1152}')
    e('s_mov_b32 s40, 0x00003f80\ns_mov_b32 s41, 0x3f800000')
    AC = 96
    for j in range(8):
        e.wait_vm(('P', j, 1))
        for t in range(2):
            b = PB + (j*2+t)*4
            for k in range(4):
                a0 = AC + t*8 + (k >> 1)*4 + (k & 1)*2
                c0 = '0' if j == 0 else f'v{a0}'; c1 = '0' if j == 0 else f'v{a0+1}'
                e(f'v_dot2_f32_bf16 v{a0}, v{b+k}, s40, {c0}')
                e(f'v_dot2_f32_bf16 v{a0+1}, v{b+k}, s41, {c1}')
    e.stamp(2)
    e.wait_vm('B1')
    TM = 16
    OB = 112
    for m in range(2):
        for t in range(2):
            for k in range(2):
                a0 = AC + t*8 + m*4 + 2*k
                e(f'v_cvt_pk_bf16_f32 v{TM}, v{a0}, v{a0+1}')
                e(f'v_lshlrev_b32 v{TM+1}, 16, v{TM}\nv_and_b32 v{TM+2}, 0xffff0000, v{TM}')
                bb = BB + 2*t + k
                e(f'v_lshlrev_b32 v{TM+3}, 16, v{bb}\nv_and_b32 v{TM+4}, 0xffff0000, v{bb}')
                e(f'v_add_f32 v{TM+1}, v{TM+1}, v{TM+3}\nv_add_f32 v{TM+2}, v{TM+2}, v{TM+4}')
                e(f'v_cvt_pk_bf16_f32 v{TM}, v{TM+1}, v{TM+2}')
                e(f'v_lshlrev_b32 v{TM+1}, 16, v{TM}\nv_and_b32 v{TM+2}, 0xffff0000, v{TM}')
                hb = HB + 4*m + 2*t + k
                e(f'v_lshlrev_b32 v{TM+3}, 16, v{hb}\nv_and_b32 v{TM+4}, 0xffff0000, v{hb}')
                e(f'v_add_f32 v{TM+1}, v{TM+1}, v{TM+3}\nv_add_f32 v{TM+2}, v{TM+2}, v{TM+4}')
                e(f'v_cvt_pk_bf16_f32 v{OB+4*m+2*t+k}, v{TM+1}, v{TM+2}')
        o = OB + 4*m
        e.vm(f'buffer_store_dwordx4 v[{o}:{o+3}], v6, s[{OUT}:{OUT+3}], s{37+m} offen')
    e.stamp(3)
    e.label(f'{name}_end')
    e.prof_dump(4, name)
    e.label(f'{name}_exit')
    e('s_endpgm')
    return kernel_header(name) + e.text(verbose=True) + kernel_desc(name, 128)

if __name__ == '__main__':
    t = gen_k5()
    open('k5.s', 'w').write('; @launch kernel=k5_kernel grid=(288,1,1) block=(256,1,1) lds=0\n.amdgcn_target "amdgcn-amd-amdhsa--gfx950"\n' + t)
```

```python
import numpy as np
S, D, F = 2048, 576, 4608
OFF_T   = 0x0
OFF_V   = 0x240000
OFF_H   = 0x480000
OFF_WT  = 0x6C0000
OFF_QT  = 0x900000
OFF_ST  = 0x910000
OFF_BC  = 0x930000
OFF_W1P = 0x940000
OFF_W2P = 0xE50000
OFF_P   = 0x1360000
WS_END  = 0x2560000

def row_of(b, mt, n):
    si, nt = mt >> 1, mt & 1
    return 64*(16*nt + n) + 2*b + si

def slots_d(q, g):
    return [32*q + 8*g + s for s in range(8)]
def dperm(dtg, i):
    return 32*(dtg >> 1) + 8*(i >> 2) + 4*(dtg & 1) + (i & 3)

def pack_H(h):
    H = np.zeros((32, 4, 18, 64, 8), h.dtype)
    for b in range(32):
        for mt in range(4):
            for l in range(64):
                n, g = l & 15, l >> 4
                r = row_of(b, mt, n)
                for q in range(18):
                    H[b, mt, q, l] = h[r, slots_d(q, g)]
    return H
def unpack_H(H):
    h = np.zeros((S, D), H.dtype)
    for b in range(32):
        for mt in range(4):
            for l in range(64):
                n, g = l & 15, l >> 4
                r = row_of(b, mt, n)
                for q in range(18):
                    h[r, slots_d(q, g)] = H[b, mt, q, l]
    return h

def pack_W1(w1):
    out = np.zeros((8, 4, 9, 18, 64, 8), w1.dtype)
    l = np.arange(64); i = l & 15; g = l >> 4
    for j in range(8):
        for w in range(4):
            for p in range(9):
                f = 576*j + 144*w + 16*p + i
                for q in range(18):
                    for s in range(8):
                        d = 32*q + 8*g + s
                        out[j, w, p, q, :, s] = w1[d, f]
    return out
def ftile_base(u): return 144*(u & 3) + 16*(u >> 2)
def pack_W2(w2):
    out = np.zeros((8, 4, 9, 18, 64, 8), w2.dtype)
    l = np.arange(64); i = l & 15; g = l >> 4
    for j in range(8):
        for w in range(4):
            for q2 in range(18):
                for dt in range(9):
                    dcol = dperm(9*w + dt, i)
                    for s in range(8):
                        u = 2*q2 + (s >> 2)
                        f = 576*j + ftile_base(u) + 4*g + (s & 3)
                        out[j, w, dt, q2, :, s] = w2[f, dcol]
    return out
def pack_BC(b1, cs):
    out = np.zeros((8, 4, 9, 4, 8), np.float32)
    for j in range(8):
        for w in range(4):
            for p in range(9):
                for g in range(4):
                    f = 576*j + 144*w + 16*p + 4*g + np.arange(4)
                    out[j, w, p, g, :4] = b1[f]; out[j, w, p, g, 4:] = cs[f]
    return out
def pack_ST(h):
    out = np.zeros((32, 6, 64, 2), np.float32)
    for b in range(32):
        for mt in range(4):
            for n in range(16):
                r = row_of(b, mt, n)
                seg = h[r].astype(np.float32).reshape(6, 96)
                out[b, :, mt*16+n, 0] = seg.sum(1); out[b, :, mt*16+n, 1] = (seg*seg).sum(1)
    return out
def unpack_P(P):
    out = np.zeros((8, S, D), P.dtype)
    l = np.arange(64); n = l & 15; g = l >> 4
    for b in range(32):
        for w in range(4):
            for dt in range(9):
                for a in range(2):
                    for t in range(2):
                        mt = 2*a + t
                        rows = row_of(b, mt, n)
                        for r in range(4):
                            d = dperm(9*w + dt, 4*g + r)
                            out[:, rows, d] = P[:, b, w, dt, a, :, 4*t + r]
    return out
```

```python
import k1, k2, k3, k4, k5, k4v2, k3v3, k1v2
NAME = 'sequential_preLN__spectral_gfnet__dense_activation_gelu__prompt'
K4DEF = dict(nh0=8, na0=6, store_mod='sc1', sp=2, rate=(2,), rate2=(2,))
def build(k4kw=None, extra_launch='', dup=None):
    k4kw = dict(K4DEF, **(k4kw or {}))
    ref = open('cdna_kernels/' + NAME + '.s.ref').read().split('\n')
    hdr = [l for l in ref if l.startswith(';') and '@launch' not in l and 'Override launch' not in l and 'grid=ceil' not in l]
    top = []
    for l in ref:
        if l.startswith('; Override'): break
        top.append(l)
    launches = [
        '; @launch kernel=k1_kernel grid=(256,1,1) block=(256,1,1) lds=91136',
        '; @launch kernel=k2_kernel grid=(216,1,1) block=(256,1,1) lds=77824',
        '; @launch kernel=k3_kernel grid=(256,1,1) block=(256,1,1) lds=153600',
        '; @launch kernel=k4_kernel grid=(256,1,1) block=(256,1,1) lds=147456',
        '; @launch kernel=k5_kernel grid=(1152,1,1) block=(64,1,1) lds=0',
    ]
    if dup is not None: launches = launches[:dup+1] + [launches[dup]] + launches[dup+1:]
    t4, gend = k4v2.gen_k4(**(k4kw or {}))
    body = k1v2.gen_k1_full() + k2.gen_k2() + k3v3.gen_k3() + t4 + k5.gen_k5()
    return '\n'.join(top) + '\n' + '\n'.join(launches) + extra_launch + '\n.amdgcn_target "amdgcn-amd-amdhsa--gfx950"\n' + body
if __name__ == '__main__':
    t = build()
    open('full.s', 'w').write(t)
    open('cdna_kernels/' + NAME + '.s', 'w').write(t)
    print(len(t))
```

```python
import build, sys, re
from asmlib import *
base = build.build()
lines = base.split('\n')
li = [i for i, l in enumerate(lines) if l.startswith('; @launch')]
L = [lines[i] for i in li]
def mk(newL, body=None):
    ls = (body or base).split('\n')
    out = ls[:li[0]] + newL + ls[li[-1]+1:]
    return '\n'.join(out)
open('v_base.s', 'w').write(base)
open('v_dupall.s', 'w').write(mk(L + L))
def with_prefetch(body, nwg=8):
    ls = body.split('\n')
    out = []
    for l in ls:
        out.append(l)
        if l == 'k1_kernel_side:':
            out += [
                f's_cmp_ge_u32 s2, {192+nwg}',
                's_cbranch_scc1 k1_pf_done',
                's_getpc_b64 s[52:53]',
                'k1_pf_pc:',
                's_sub_u32 s52, s52, k1_pf_pc-k1_kernel',
                's_subb_u32 s53, s53, 0',
                'v_lshlrev_b32 v40, 4, v0',
                's_mov_b32 s54, 0',
                'k1_pf_loop:',
                'global_load_dwordx4 v[44:47], v40, s[52:53]',
                'v_add_u32 v40, 4096, v40',
                's_add_u32 s54, s54, 4096',
                's_cmp_lt_u32 s54, code_end_lbl-k1_kernel',
                's_cbranch_scc1 k1_pf_loop',
                's_waitcnt vmcnt(0)',
                'k1_pf_done:',
            ]
    txt = '\n'.join(out)
    idx = txt.rindex('s_endpgm')
    txt = txt[:idx] + 's_endpgm\ncode_end_lbl:\n.fill 1024, 4, 0xbf800000\n' + txt[idx+len('s_endpgm'):]
    return txt
open('v_pf.s', 'w').write(with_prefetch(base))
```
